```python
import torch

def _softmax(x, axis=-1):
    return torch.softmax(x, dim=axis)

def _gelu(x):
    return torch.nn.functional.gelu(x, approximate='tanh')

def _silu(x):
    return torch.nn.functional.silu(x)

def _sigmoid(x):
    return torch.sigmoid(x)

def _layernorm(x, axis=-1, eps=1e-05):
    m = x.mean(dim=axis, keepdim=True)
    v = x.var(dim=axis, keepdim=True, unbiased=False)
    return (x - m) / torch.sqrt(v + eps)

def _scatter_add(tgt, idx, src, axis=0):
    return tgt.clone().index_add_(axis, idx, src)

def _segment_sum(src, seg, n):
    out = torch.zeros((n,) + src.shape[1:], dtype=src.dtype)
    return out.index_add_(0, seg, src)

def _pad(x, pw):
    flat = tuple((v for pair in reversed(pw) for v in pair))
    return torch.nn.functional.pad(x, flat)
kernel_name = 'standalone__tree_speculative_verify_tree_attention_over_candidate_token_tree__sampling'

def setup_inputs():

    _w = lambda a: (lambda t: t.to(torch.bfloat16) if t.is_floating_point() else t)(torch.as_tensor(a))
    B, Hq, Hkv, T, C, D = (16, 32, 8, 1, 4096, 128)
    tree_mask = torch.zeros((B, T, T), dtype=float)
    for b in range(B):
        parent = torch.zeros(T, dtype=torch.int64)
        for i in range(1, T):
            parent[i] = int(torch.randint(0, i, (1,)).item())
        for i in range(T):
            j = i
            tree_mask[b, i, j] = 1.0
            while j > 0:
                j = parent[j]
                tree_mask[b, i, j] = 1.0
    return {'q': _w((lambda *s: torch.randn(*s, dtype=torch.bfloat16) * 0.8)(B, Hq, T, D)), 'k_cache': _w((lambda *s: torch.randn(*s, dtype=torch.bfloat16) * 0.8)(B, Hkv, C, D)), 'v_cache': _w((lambda *s: torch.randn(*s, dtype=torch.bfloat16) * 0.05)(B, Hkv, C, D)), 'k_tree': _w((lambda *s: torch.randn(*s, dtype=torch.bfloat16) * 0.8)(B, Hkv, T, D)), 'v_tree': _w((lambda *s: torch.randn(*s, dtype=torch.bfloat16) * 0.05)(B, Hkv, T, D)), 'tree_mask': _w(tree_mask)}

def reference(q, k_cache, v_cache, k_tree, v_tree, tree_mask):
    B, Hq, T, D = q.shape
    Hkv, C = (k_cache.shape[1], k_cache.shape[2])
    rep = Hq // Hkv
    kc = (lambda x, n, axis: torch.repeat_interleave(x, n, dim=axis))(k_cache, rep, axis=1)
    vc = (lambda x, n, axis: torch.repeat_interleave(x, n, dim=axis))(v_cache, rep, axis=1)
    kt = (lambda x, n, axis: torch.repeat_interleave(x, n, dim=axis))(k_tree, rep, axis=1)
    vt = (lambda x, n, axis: torch.repeat_interleave(x, n, dim=axis))(v_tree, rep, axis=1)
    k = torch.concatenate([kc, kt], axis=2)
    v = torch.concatenate([vc, vt], axis=2)
    scale = D ** (-0.5)
    scores = torch.einsum('bhqd,bhkd->bhqk', q, k) * scale
    ctx_mask = torch.ones((B, 1, T, C), dtype=scores.dtype)
    tm = tree_mask[:, None, :, :].clone()
    full_mask = torch.concatenate([ctx_mask, tm], axis=-1)
    scores = scores + (1.0 - full_mask) * -1000000000.0
    p = _softmax(scores, axis=-1)
    return torch.einsum('bhqk,bhkd->bhqd', p, v)
```

```python
import re

TRANS = ("v_exp_", "v_log_", "v_rcp_", "v_rsq_", "v_sqrt_", "v_sin_", "v_cos_")


def regs_of(op):
    op = op.strip()
    op = op.lstrip("-")
    m = re.fullmatch(r"(?:abs\()?\|?([vas])(\d+)\|?\)?", op)
    if m:
        return {m.group(1) + m.group(2)}
    m = re.fullmatch(r"([vas])\[(\d+):(\d+)\]", op)
    if m:
        return {m.group(1) + str(i) for i in range(int(m.group(2)), int(m.group(3)) + 1)}
    if op in ("vcc", "vcc_lo", "vcc_hi"):
        return {"vcc"}
    if op in ("exec", "exec_lo", "exec_hi"):
        return {"exec"}
    if op == "m0":
        return {"m0"}
    return set()


def mfma_passes(mn):
    if "32x32x16" in mn or "32x32x8" in mn:
        return 8
    if "16x16x32" in mn or "16x16x16" in mn:
        return 4
    if "4x4x4" in mn:
        return 2
    raise ValueError(mn)


class Ins:
    def __init__(self, text):
        self.text = text
        t = text.split(";")[0].strip()
        self.is_label = t.endswith(":")
        self.is_dir = t.startswith(".") and not self.is_label
        self.mn = t.split()[0] if t else ""
        rest = t[len(self.mn):].strip()
        ops = [o.strip() for o in re.split(r",\s*(?![^\[]*\])", rest)] if rest else []
        self.mods = ""
        if ops:
            parts = ops[-1].split(None, 1)
            if len(parts) == 2 and not ops[-1].startswith("abs("):
                ops[-1] = parts[0]
                self.mods = parts[1]
        self.ops = ops
        mn = self.mn
        self.cls = None
        self.w = set()
        self.r = set()
        self.srcC = set()
        self.srcAB = set()
        self.store_data = set()
        self.dpp = False
        if self.is_label or self.is_dir or not mn:
            return
        R = [regs_of(o) for o in ops]
        allr = lambda l: set().union(*l) if l else set()
        if mn.startswith("v_mfma"):
            self.cls = "mfma"
            self.w = R[0]
            self.srcAB = R[1] | R[2]
            self.srcC = R[3]
            self.r = self.srcAB | self.srcC
            self.passes = mfma_passes(mn)
        elif mn.startswith("v_"):
            self.cls = "valu"
            self.trans = mn.startswith(TRANS)
            self.dpp = ("row_" in self.mods or "quad_perm" in self.mods or "wave_" in self.mods or "_dpp" in mn)
            if mn.startswith("v_permlane") and "swap" in mn:
                self.w = R[0] | R[1]
                self.r = R[0] | R[1]
                self.perm = True
            elif mn.startswith("v_cmpx"):
                self.w = R[0] | {"exec"}
                self.r = allr(R[1:])
            elif mn.startswith(("v_add_co", "v_sub_co", "v_addc_co", "v_subb_co", "v_mad_u64", "v_div_scale")):
                self.w = R[0] | R[1]
                self.r = allr(R[2:])
            else:
                self.w = R[0]
                self.r = allr(R[1:])
                if mn.startswith(("v_fmac", "v_dot2c", "v_pk_fmac", "v_writelane")) or self.dpp:
                    self.r |= R[0]
                if mn.startswith("v_cndmask") and len(ops) == 3:
                    self.r |= {"vcc"}
        elif mn.startswith(("buffer_", "global_", "flat_")):
            self.cls = "vmem"
            if mn.startswith("buffer_"):
                if " lds" in (" " + self.mods) or mn in ("buffer_wbl2", "buffer_inv"):
                    self.r = allr(R) | {"m0"}
                elif "load" in mn:
                    self.w = R[0]
                    self.r = allr(R[1:])
                elif "atomic" in mn:
                    self.r = allr(R)
                    if "sc0" in self.mods:
                        self.w = R[0]
                else:
                    self.r = allr(R)
                    if "x3" in mn or "x4" in mn:
                        self.store_data = R[0]
            else:
                if "load_lds" in mn:
                    self.r = allr(R) | {"m0"}
                elif "load" in mn:
                    self.w = R[0]
                    self.r = allr(R[1:])
                elif "atomic" in mn:
                    if "sc0" in self.mods:
                        self.w = R[0]
                        self.r = allr(R[1:])
                    else:
                        self.r = allr(R)
                else:
                    self.r = allr(R)
                    if "x3" in mn or "x4" in mn:
                        self.store_data = R[1]
        elif mn.startswith("ds_"):
            self.cls = "ds"
            if "read" in mn or "permute" in mn or "swizzle" in mn or "rtn" in mn:
                self.w = R[0]
                self.r = allr(R[1:])
            else:
                self.r = allr(R)
        elif mn.startswith("s_"):
            self.cls = "salu"
            if mn.startswith(("s_cmp", "s_cbranch", "s_branch", "s_waitcnt", "s_nop", "s_barrier", "s_endpgm",
                              "s_sleep", "s_setprio", "s_bitcmp")):
                self.r = allr(R)
            else:
                self.w = R[0] if R else set()
                self.r = allr(R[1:])
                if "saveexec" in mn:
                    self.w |= {"exec"}
        else:
            raise ValueError("unknown instr: " + text)

    def states(self):
        if self.is_label or self.is_dir or not self.mn:
            return 0
        if self.mn == "s_nop":
            return int(self.ops[0], 0) + 1
        return 1


def need(p, c):
    n = 0
    isv = lambda s: {x for x in s if x[0] in "va" and x != "vcc"}
    iss = lambda s: {x for x in s if x[0] == "s" or x == "vcc"}
    if p.cls == "valu":
        pw_v = isv(p.w)
        pw_s = iss(p.w)
        if c.cls == "mfma" and pw_v & c.r:
            n = max(n, 2)
        if c.cls == "mfma" and "exec" in p.w:
            n = max(n, 4)
        if c.cls == "valu":
            if getattr(c, "perm", False) and pw_v & c.r:
                n = max(n, 2)
            if c.dpp and pw_v & c.r:
                n = max(n, 2)
            if c.dpp and "exec" in p.w:
                n = max(n, 5)
            if p.trans and not c.trans and pw_v & c.r:
                n = max(n, 1)
            if c.mn.startswith(("v_readlane", "v_readfirstlane")) and pw_v & c.r:
                n = max(n, 1)
            if pw_s & c.r:
                n = max(n, 4 if c.mn.startswith(("v_readlane", "v_writelane", "v_div_fmas")) else 2)
            if "exec" in p.w and c.mn.startswith(("v_readlane", "v_readfirstlane", "v_writelane", "v_permlane")):
                n = max(n, 4)
            if ("op_sel" in p.mods or "sdwa" in p.mn or "dst_sel" in p.mods) and pw_v & (c.r | c.w):
                n = max(n, 1)
            if p.mn.startswith("v_dot") and pw_v & (c.r | c.w):
                n = max(n, 3)
        if c.cls == "vmem" and pw_s & c.r:
            n = max(n, 5)
        if c.cls == "salu" and pw_s & c.r:
            n = max(n, 2)
    if p.cls == "mfma":
        k = {2: 0, 4: 1, 8: 2, 16: 3}[p.passes]
        if c.cls == "mfma":
            if p.w & c.srcAB:
                n = max(n, [5, 8, 12, 20][k])
            if p.w & c.srcC:
                if p.w == c.srcC and p.passes == c.passes:
                    n = max(n, [2, 0, 0, 0][k])
                else:
                    n = max(n, [4, 6, 10, 18][k])
            elif p.w & c.w:
                n = max(n, [5, 8, 12, 20][k])
        elif c.cls in ("valu", "vmem", "ds"):
            if p.w & (c.r | c.w):
                n = max(n, [5, 8, 12, 20][k])
            if c.cls == "valu" and p.srcC & c.w:
                n = max(n, [1, 3, 7, 15][k])
    if p.cls == "vmem" and p.store_data and c.cls in ("valu", "mfma", "vmem", "ds") and p.store_data & c.w:
        n = max(n, 2)
    if p.cls == "salu" and "m0" in p.w and c.cls in ("vmem", "ds") and "m0" in c.r:
        n = max(n, 1)
    if p.cls == "salu" and "exec" in p.w and c.cls == "valu" and c.dpp:
        n = max(n, 1)
    return n


class Asm:
    def __init__(self):
        self.lines = []

    def __call__(self, text):
        for l in text.split("\n"):
            if l.strip():
                self.lines.append(l.strip())

    def fix(self):
        out = []
        for l in self.lines:
            if l.startswith(";"):
                out.append(Ins(""))
                out[-1].text = l
                continue
            c = Ins(l)
            if c.cls:
                dist = 0
                req = 0
                for p in reversed(out):
                    if dist > 24:
                        break
                    if p.cls:
                        n = need(p, c)
                        if n > dist:
                            req = max(req, n - dist)
                    dist += p.states()
                while req > 0:
                    k = min(req, 16)
                    out.append(Ins("s_nop %d" % (k - 1)))
                    req -= k
            out.append(c)
        return out

    def text(self):
        res = []
        for i in self.fix():
            t = i.text
            if i.is_label or i.is_dir:
                res.append(t)
            else:
                res.append("    " + t)
        return "\n".join(res) + "\n"
```

```python
import sys, argparse, math
sys.path.insert(0, "gen")
from asmlib import Asm

NAME = "standalone__tree_speculative_verify_tree_attention_over_candidate_token_tree__sampling"
HEADER = open("cdna_kernels/%s.s.ref" % NAME).read().split("; Override launch")[0]


def f2u(x):
    import struct
    return struct.unpack("<I", struct.pack("<f", x))[0]


def gen(W=8, D=3, NB=2, order="inter", kpol="", vpol="", stamp=False):
    a = Asm()
    TK = 16 * NB
    TB = TK * 256
    NT = 2048 // TK // W
    sK, sV, sQ, sT = 24, 28, 32, 36
    sPair, sHalf, sWave, sC = 40, 41, 42, 43
    sOffK, sOffV = 44, 46
    sTmp = 48
    vKo, vVo, vM0, vM1, vM, vL, vT0, vT1, vAl, vMc = 1, 2, 3, 4, 5, 6, 7, 8, 9, 10
    vLane = 11
    base = 12
    vQ = base; base += 16
    vS = base; base += 4 * NB
    vP = base; base += 8 * NB
    vO = base; base += 8
    vStg = base
    STG = 32 * NB
    nv = vStg + D * STG
    assert nv <= 512
    use_agpr = nv > 256

    def reg(i, n):
        if i >= 256:
            return "a[%d:%d]" % (i - 256, i - 256 + n - 1)
        assert i + n <= 256
        return "v[%d:%d]" % (i, i + n - 1)

    if use_agpr:
        assert (256 - vStg) % 4 == 0

    vm = []

    def issue(tag, text):
        a(text)
        vm.append(tag)

    def wait(tag):
        last = max(i for i, t in enumerate(vm) if t == tag)
        n = len(vm) - 1 - last
        assert n <= 63
        a("s_waitcnt vmcnt(%d)" % n)
        del vm[: last + 1]

    a("s_cmp_ge_u32 s2, 256")
    a("s_cbranch_scc1 L_end")
    a("s_load_dwordx16 s[4:19], s[0:1], 0")
    a("s_load_dwordx2 s[20:21], s[0:1], 64")
    if stamp:
        a("s_memrealtime s[60:61]")
    a("v_lshrrev_b32 v%d, 6, v0" % vT0)
    a("v_and_b32 v%d, 63, v0" % vLane)
    a("v_readfirstlane_b32 s%d, v%d" % (sWave, vT0))
    a("s_lshr_b32 s%d, s2, 1" % sPair)
    a("s_and_b32 s%d, s2, 1" % sHalf)
    a("v_and_b32 v%d, 3, v%d" % (vT0, vLane))
    a("v_lshlrev_b32 v%d, 10, v%d" % (vKo, vT0))
    a("v_bfe_u32 v%d, v%d, 2, 2" % (vT1, vLane))
    a("v_lshl_add_u32 v%d, v%d, 8, v%d" % (vKo, vT1, vKo))
    a("v_lshrrev_b32 v%d, 4, v%d" % (vAl, vLane))
    a("v_lshl_add_u32 v%d, v%d, 4, v%d" % (vKo, vAl, vKo))
    a("v_lshlrev_b32 v%d, 4, v%d" % (vVo, vLane))
    a("v_lshlrev_b32 v%d, 8, v%d" % (vMc, vT1))
    a("v_lshl_add_u32 v%d, v%d, 4, v%d" % (vMc, vAl, vMc))
    a("s_lshl_b32 s%d, s2, 19" % sOffK)
    if order == "inter":
        a("s_mul_i32 s%d, s%d, %d" % (sTmp, sWave, TB))
        step = TB * W
    else:
        a("s_mul_i32 s%d, s%d, %d" % (sTmp, sWave, TB * NT))
        step = TB
    a("s_add_u32 s%d, s%d, s%d" % (sOffK, sOffK, sTmp))
    a("s_mov_b32 s%d, s%d" % (sOffV, sOffK))
    a("s_mov_b32 s%d, 0x8000000" % (sK + 2))
    a("s_mov_b32 s%d, 0x20000" % (sK + 3))
    a("s_mov_b32 s%d, 0x8000000" % (sV + 2))
    a("s_mov_b32 s%d, 0x20000" % (sV + 3))
    a("s_mov_b32 s%d, 0x20000" % (sQ + 2))
    a("s_mov_b32 s%d, 0x20000" % (sQ + 3))
    a("s_lshl_b32 s%d, s%d, 10" % (sTmp, sPair))
    a("s_waitcnt lgkmcnt(0)")
    a("s_mov_b32 s%d, s6" % sK)
    a("s_mov_b32 s%d, s7" % (sK + 1))
    a("s_mov_b32 s%d, s8" % sV)
    a("s_mov_b32 s%d, s9" % (sV + 1))
    a("s_mov_b32 s%d, s4" % sQ)
    a("s_mov_b32 s%d, s5" % (sQ + 1))

    def loadK(i):
        st = vStg + (i % D) * STG
        for b in range(NB):
            if b > 0:
                a("s_add_u32 s%d, s%d, %d" % (sOffK + 1, sOffK, b * 4096))
            so = sOffK + (1 if b > 0 else 0)
            for dq in range(4):
                r = st + (b * 4 + dq) * 4
                issue("K%d" % i, "buffer_load_dwordx4 %s, v%d, s[%d:%d], s%d offen offset:%d %s" %
                      (reg(r, 4), vKo, sK, sK + 3, so, dq * 64, kpol))
        a("s_add_u32 s%d, s%d, %d" % (sOffK, sOffK, step))

    def loadV(i):
        st = vStg + (i % D) * STG + 16 * NB
        for b in range(NB):
            if b > 0:
                a("s_add_u32 s%d, s%d, %d" % (sOffV + 1, sOffV, b * 4096))
            so = sOffV + (1 if b > 0 else 0)
            for r4 in range(4):
                r = st + (b * 4 + r4) * 4
                issue("V%d" % i, "buffer_load_dwordx4 %s, v%d, s[%d:%d], s%d offen offset:%d %s" %
                      (reg(r, 4), vVo, sV, sV + 3, so, r4 * 1024, vpol))
        a("s_add_u32 s%d, s%d, %d" % (sOffV, sOffV, step))

    loadK(0)
    for dq in range(4):
        issue("K0", "buffer_load_dwordx4 v[%d:%d], v%d, s[%d:%d], s%d offen offset:%d" %
              (vQ + dq * 4, vQ + dq * 4 + 3, vMc, sQ, sQ + 3, sTmp, dq * 64))
    loadV(0)
    for i in range(1, min(D, NT)):
        loadK(i)
        loadV(i)
    a("v_and_b32 v%d, 1, v%d" % (vM0, vLane))
    a("v_lshlrev_b32 v%d, 4, v%d" % (vM0, vM0))
    a("v_mov_b32 v%d, 0xffff" % vM1)
    a("v_lshlrev_b32 v%d, v%d, v%d" % (vT1, vM0, vM1))
    a("v_cmp_gt_u32 vcc, 2, v%d" % vT0)
    a("v_cndmask_b32 v%d, 0, v%d, vcc" % (vM0, vT1))
    a("v_xor_b32 v%d, v%d, v%d" % (vM1, vM0, vT1))
    a("v_mov_b32 v%d, 0xff800000" % vM)
    a("v_mov_b32 v%d, 0" % vL)
    for r in range(8):
        a("v_mov_b32 v%d, 0" % (vO + r))
    c = (128 ** -0.5) * math.log2(math.e)
    a("s_mov_b32 s%d, 0x%08x" % (sC, f2u(c)))

    for i in range(NT):
        a("; ---- tile %d" % i)
        st = vStg + (i % D) * STG
        wait("K%d" % i)
        if stamp and i == 0:
            a("s_memrealtime s[62:63]")
        for dq in range(4):
            for b in range(NB):
                r = st + (b * 4 + dq) * 4
                d = "v[%d:%d]" % (vS + 4 * b, vS + 4 * b + 3)
                a("v_mfma_f32_16x16x32_bf16 %s, %s, v[%d:%d], %s" %
                  (d, reg(r, 4), vQ + dq * 4, vQ + dq * 4 + 3, "0" if dq == 0 else d))
        if i + D < NT:
            loadK(i + D)
        n = 4 * NB
        a("v_max3_f32 v%d, v%d, v%d, v%d" % (vT0, vS, vS + 1, vM))
        k = 2
        while k + 1 < n:
            a("v_max3_f32 v%d, v%d, v%d, v%d" % (vT0, vS + k, vS + k + 1, vT0))
            k += 2
        a("v_mov_b32 v%d, v%d" % (vT1, vT0))
        a("v_permlane32_swap_b32 v%d, v%d" % (vT0, vT1))
        a("v_max_f32 v%d, v%d, v%d" % (vT0, vT0, vT1))
        a("v_mov_b32 v%d, v%d" % (vT1, vT0))
        a("v_permlane16_swap_b32 v%d, v%d" % (vT0, vT1))
        a("v_max_f32 v%d, v%d, v%d" % (vT0, vT0, vT1))
        a("v_sub_f32 v%d, v%d, v%d" % (vAl, vM, vT0))
        a("v_mul_f32 v%d, s%d, v%d" % (vMc, sC, vT0))
        a("v_mul_f32 v%d, s%d, v%d" % (vAl, sC, vAl))
        a("v_mov_b32 v%d, v%d" % (vM, vT0))
        a("v_exp_f32 v%d, v%d" % (vAl, vAl))
        for k in range(n):
            a("v_fma_f32 v%d, v%d, s%d, -v%d" % (vS + k, vS + k, sC, vMc))
        for k in range(n):
            a("v_exp_f32 v%d, v%d" % (vS + k, vS + k))
        for r in range(8):
            a("v_mul_f32 v%d, v%d, v%d" % (vO + r, vO + r, vAl))
        a("v_mul_f32 v%d, v%d, v%d" % (vL, vL, vAl))
        for k in range(n):
            a("v_cvt_pk_bf16_f32 v%d, v%d, v%d" % (vP + 2 * k + 1, vS + k, vS + k))
            a("v_add_f32 v%d, v%d, v%d" % (vL, vL, vS + k))
        for k in range(n):
            a("v_and_b32 v%d, v%d, v%d" % (vP + 2 * k, vP + 2 * k + 1, vM0))
            a("v_and_b32 v%d, v%d, v%d" % (vP + 2 * k + 1, vP + 2 * k + 1, vM1))
        wait("V%d" % i)
        sv = st + 16 * NB
        for k in range(n):
            for u in range(2):
                r = sv + k * 4 + 2 * u
                d = "v[%d:%d]" % (vO + 4 * u, vO + 4 * u + 3)
                a("v_mfma_f32_16x16x16_bf16 %s, %s, v[%d:%d], %s" % (d, reg(r, 2), vP + 2 * k, vP + 2 * k + 1, d))
        if i + D < NT:
            loadV(i + D)
    if stamp:
        a("s_memrealtime s[64:65]")
    vX = vStg
    vTq, vTk, vTv, vTm = vX, vX + 4, vX + 8, vX + 12
    a("s_cmp_lg_u32 s%d, 0" % sWave)
    a("s_cbranch_scc1 L_notree")
    a("v_and_b32 v%d, 15, v%d" % (vT0, vLane))
    a("v_lshlrev_b32 v%d, 4, v%d" % (vT0, vT0))
    a("s_lshl_b32 s%d, s%d, 10" % (sTmp, sPair))
    a("buffer_load_dwordx4 v[%d:%d], v%d, s[%d:%d], s%d offen" % (vTq, vTq + 3, vVo, sQ, sQ + 3, sTmp))
    a("s_mov_b32 s%d, s10" % sT)
    a("s_mov_b32 s%d, s11" % (sT + 1))
    a("s_mov_b32 s%d, 0x8000" % (sT + 2))
    a("s_mov_b32 s%d, 0x20000" % (sT + 3))
    a("s_lshl_b32 s%d, s%d, 8" % (sTmp, sPair))
    a("buffer_load_dwordx4 v[%d:%d], v%d, s[%d:%d], s%d offen" % (vTk, vTk + 3, vT0, sT, sT + 3, sTmp))
    a("s_mov_b32 s%d, s12" % sK)
    a("s_mov_b32 s%d, s13" % (sK + 1))
    a("s_mov_b32 s%d, 0x8000" % (sK + 2))
    a("buffer_load_dwordx4 v[%d:%d], v%d, s[%d:%d], s%d offen" % (vTv, vTv + 3, vT0, sK, sK + 3, sTmp))
    a("s_mov_b32 s%d, s14" % sV)
    a("s_mov_b32 s%d, s15" % (sV + 1))
    a("s_mov_b32 s%d, 32" % (sV + 2))
    a("s_lshr_b32 s%d, s%d, 3" % (sTmp, sPair))
    a("s_lshl_b32 s%d, s%d, 1" % (sTmp, sTmp))
    a("buffer_load_ushort v%d, off, s[%d:%d], s%d" % (vTm, sV, sV + 3, sTmp))
    a("L_notree:")
    a("v_mov_b32 v%d, v%d" % (vT1, vL))
    a("v_permlane32_swap_b32 v%d, v%d" % (vL, vT1))
    a("v_add_f32 v%d, v%d, v%d" % (vL, vL, vT1))
    a("v_mov_b32 v%d, v%d" % (vT1, vL))
    a("v_permlane16_swap_b32 v%d, v%d" % (vL, vT1))
    a("v_add_f32 v%d, v%d, v%d" % (vAl, vL, vT1))
    assert vT1 % 2 == 0 and vAl == vT1 + 1
    a("v_mov_b32 v%d, v%d" % (vT1, vMc))
    ML = W * 2048
    a("v_bfe_u32 v%d, v%d, 2, 2" % (vT0, vLane))
    a("s_lshl_b32 s%d, s%d, 5" % (sTmp, sWave))
    a("v_lshl_add_u32 v%d, v%d, 3, s%d" % (vM0, vT0, sTmp))
    a("ds_write_b64 v%d, v[%d:%d] offset:%d" % (vM0, vT1, vT1 + 1, ML))
    a("v_lshlrev_b32 v%d, 9, v%d" % (vM1, vT0))
    a("v_lshrrev_b32 v%d, 4, v%d" % (vT0, vLane))
    a("v_lshl_add_u32 v%d, v%d, 7, v%d" % (vM1, vT0, vM1))
    a("v_and_b32 v%d, 3, v%d" % (vT0, vLane))
    a("v_lshl_add_u32 v%d, v%d, 2, v%d" % (vM1, vT0, vM1))
    a("s_lshl_b32 s%d, s%d, 11" % (sTmp, sWave))
    a("v_add_u32 v%d, s%d, v%d" % (vM1, sTmp, vM1))
    for r in range(4):
        a("ds_write2_b32 v%d, v%d, v%d offset0:%d offset1:%d" % (vM1, vO + r, vO + 4 + r, r * 8, r * 8 + 4))
    a("s_waitcnt lgkmcnt(0)")
    a("s_barrier")
    a("s_cmp_lg_u32 s%d, 0" % sWave)
    a("s_cbranch_scc1 L_end")
    vML = vX + 16
    vOW = vML + 2 * W
    assert vOW + 8 * W <= 256
    a("v_lshrrev_b32 v%d, 4, v%d" % (vT0, vLane))
    a("v_lshlrev_b32 v%d, 3, v%d" % (vM0, vT0))
    a("v_lshlrev_b32 v%d, 5, v%d" % (vM1, vLane))
    for w in range(W):
        a("ds_read_b64 v[%d:%d], v%d offset:%d" % (vML + 2 * w, vML + 2 * w + 1, vM0, ML + w * 32))
    for w in range(W):
        a("ds_read_b128 v[%d:%d], v%d offset:%d" % (vOW + 8 * w, vOW + 8 * w + 3, vM1, w * 2048))
        a("ds_read_b128 v[%d:%d], v%d offset:%d" % (vOW + 8 * w + 4, vOW + 8 * w + 7, vM1, w * 2048 + 16))
    a("s_waitcnt vmcnt(0)")
    a("v_mov_b32 v%d, 0" % vL)
    for k in range(4):
        a("v_lshlrev_b32 v%d, 16, v%d" % (vT0, vTq + k))
        a("v_lshlrev_b32 v%d, 16, v%d" % (vT1, vTk + k))
        a("v_fmac_f32 v%d, v%d, v%d" % (vL, vT0, vT1))
        a("v_and_b32 v%d, 0xffff0000, v%d" % (vT0, vTq + k))
        a("v_and_b32 v%d, 0xffff0000, v%d" % (vT1, vTk + k))
        a("v_fmac_f32 v%d, v%d, v%d" % (vL, vT0, vT1))
    for sh in (8, 4, 2, 1):
        a("v_add_f32_dpp v%d, v%d, v%d row_ror:%d row_mask:0xf bank_mask:0xf" % (vL, vL, vL, sh))
    a("v_lshlrev_b32 v%d, 16, v%d" % (vTm, vTm))
    a("v_sub_f32 v%d, 1.0, v%d" % (vTm, vTm))
    a("v_mul_f32 v%d, 0x%08x, v%d" % (vTm, f2u(-1e9 * math.log2(math.e)), vTm))
    a("v_fma_f32 v%d, v%d, s%d, v%d" % (vTm, vL, sC, vTm))
    a("s_cmp_eq_u32 s%d, 0" % sHalf)
    a("s_cbranch_scc1 L_keeptree")
    a("v_mov_b32 v%d, 0xff800000" % vTm)
    a("L_keeptree:")
    for k in range(4):
        a("v_lshlrev_b32 v%d, 16, v%d" % (vO + 2 * k, vTv + k))
        a("v_and_b32 v%d, 0xffff0000, v%d" % (vO + 2 * k + 1, vTv + k))
    a("s_waitcnt lgkmcnt(%d)" % min(15, 2 * W))
    a("v_max_f32 v%d, v%d, v%d" % (vM, vTm, vML))
    for w in range(1, W):
        a("v_max_f32 v%d, v%d, v%d" % (vM, vM, vML + 2 * w))
    a("v_sub_f32 v%d, v%d, v%d" % (vTm, vTm, vM))
    a("v_exp_f32 v%d, v%d" % (vL, vTm))
    for w in range(W):
        a("v_sub_f32 v%d, v%d, v%d" % (vML + 2 * w, vML + 2 * w, vM))
    for w in range(W):
        a("v_exp_f32 v%d, v%d" % (vML + 2 * w, vML + 2 * w))
    for r in range(8):
        a("v_mul_f32 v%d, v%d, v%d" % (vO + r, vO + r, vL))
    for w in range(W):
        a("v_fmac_f32 v%d, v%d, v%d" % (vL, vML + 2 * w, vML + 2 * w + 1))
    for w in range(W):
        a("s_waitcnt lgkmcnt(%d)" % min(15, 2 * (W - 1 - w)))
        for r in range(8):
            a("v_fmac_f32 v%d, v%d, v%d" % (vO + r, vOW + 8 * w + r, vML + 2 * w))
    a("v_mov_b32 v%d, v%d" % (vT1, vM))
    a("v_mov_b32 v%d, v%d" % (vT1 + 1, vL))
    if stamp:
        a("s_memrealtime s[66:67]")
    a("s_mov_b32 s%d, s20" % sK)
    a("s_mov_b32 s%d, s21" % (sK + 1))
    a("s_mov_b32 s%d, 0x200000" % (sK + 2))
    a("s_lshl_b32 s%d, s2, 12" % sTmp)
    a("v_lshlrev_b32 v%d, 3, v%d" % (vT0, vLane))
    a("buffer_store_dwordx4 v[%d:%d], v%d, s[%d:%d], s%d offen sc0 sc1" % (vO, vO + 3, vVo, sK, sK + 3, sTmp))
    a("buffer_store_dwordx4 v[%d:%d], v%d, s[%d:%d], s%d offen offset:1024 sc0 sc1" % (vO + 4, vO + 7, vVo, sK, sK + 3, sTmp))
    a("buffer_store_dwordx2 v[%d:%d], v%d, s[%d:%d], s%d offen offset:2048 sc0 sc1" % (vT1, vT1 + 1, vT0, sK, sK + 3, sTmp))
    a("s_mov_b32 s%d, s18" % sV)
    a("s_mov_b32 s%d, s19" % (sV + 1))
    a("s_mov_b32 s%d, 256" % (sV + 2))
    a("s_and_b32 s%d, s%d, 1" % (sOffK, sPair))
    a("s_lshl_b32 s%d, s%d, 4" % (sOffK, sOffK))
    a("s_lshl_b32 s%d, 1, s%d" % (sOffK + 1, sOffK))
    a("v_mov_b32 v%d, s%d" % (vM0, sOffK + 1))
    a("s_lshr_b32 s%d, s%d, 1" % (sOffV, sPair))
    a("s_lshl_b32 s%d, s%d, 2" % (sOffV, sOffV))
    a("s_waitcnt vmcnt(0)")
    a("s_mov_b64 exec, 1")
    a("buffer_atomic_add v%d, off, s[%d:%d], s%d sc0 sc1" % (vM0, sV, sV + 3, sOffV))
    a("s_waitcnt vmcnt(0)")
    a("v_readfirstlane_b32 s%d, v%d" % (sOffV + 1, vM0))
    a("s_mov_b64 exec, -1")
    a("s_lshr_b32 s%d, s%d, s%d" % (sOffV + 1, sOffV + 1, sOffK))
    a("s_and_b32 s%d, s%d, 0xffff" % (sOffV + 1, sOffV + 1))
    if stamp:
        a("s_memrealtime s[68:69]")
    a("s_cmp_eq_u32 s%d, 0" % (sOffV + 1))
    a("s_cbranch_scc1 L_stamp")
    a("s_xor_b32 s%d, s%d, 0x1000" % (sTmp, sTmp))
    vB = vX
    a("buffer_load_dwordx2 v[%d:%d], v%d, s[%d:%d], s%d offen offset:2048 sc0 sc1" % (vB + 8, vB + 9, vT0, sK, sK + 3, sTmp))
    a("buffer_load_dwordx4 v[%d:%d], v%d, s[%d:%d], s%d offen sc0 sc1" % (vB, vB + 3, vVo, sK, sK + 3, sTmp))
    a("buffer_load_dwordx4 v[%d:%d], v%d, s[%d:%d], s%d offen offset:1024 sc0 sc1" % (vB + 4, vB + 7, vVo, sK, sK + 3, sTmp))
    a("s_mov_b32 s%d, s16" % sQ)
    a("s_mov_b32 s%d, s17" % (sQ + 1))
    a("s_lshl_b32 s%d, s%d, 10" % (sTmp, sPair))
    a("s_waitcnt vmcnt(2)")
    a("v_max_f32 v%d, v%d, v%d" % (vT0, vM, vB + 8))
    a("v_sub_f32 v%d, v%d, v%d" % (vM, vM, vT0))
    a("v_sub_f32 v%d, v%d, v%d" % (vB + 8, vB + 8, vT0))
    a("v_exp_f32 v%d, v%d" % (vM, vM))
    a("v_exp_f32 v%d, v%d" % (vB + 8, vB + 8))
    a("v_mul_f32 v%d, v%d, v%d" % (vL, vL, vM))
    a("v_fmac_f32 v%d, v%d, v%d" % (vL, vB + 9, vB + 8))
    a("v_rcp_f32 v%d, v%d" % (vL, vL))
    a("v_mul_f32 v%d, v%d, v%d" % (vM, vM, vL))
    a("v_mul_f32 v%d, v%d, v%d" % (vB + 8, vB + 8, vL))
    for r in range(8):
        a("v_mul_f32 v%d, v%d, v%d" % (vO + r, vO + r, vM))
    a("s_waitcnt vmcnt(0)")
    for r in range(8):
        a("v_fmac_f32 v%d, v%d, v%d" % (vO + r, vB + r, vB + 8))
    for k in range(4):
        a("v_cvt_pk_bf16_f32 v%d, v%d, v%d" % (vB + k, vO + 2 * k, vO + 2 * k + 1))
    a("buffer_store_dwordx4 v[%d:%d], v%d, s[%d:%d], s%d offen" % (vB, vB + 3, vVo, sQ, sQ + 3, sTmp))
    a("L_stamp:")
    if stamp:
        a("s_waitcnt vmcnt(0)")
        a("s_memrealtime s[70:71]")
        a("s_getreg_b32 s72, hwreg(HW_REG_XCC_ID)")
        a("s_getreg_b32 s73, hwreg(HW_REG_HW_ID)")
        a("s_waitcnt lgkmcnt(0)")
        for k in range(14):
            a("v_mov_b32 v%d, s%d" % (vX + k, 60 + k))
        a("s_lshl_b32 s%d, s2, 6" % sTmp)
        a("s_add_u32 s%d, s%d, 0x100000" % (sTmp, sTmp))
        a("s_mov_b64 exec, 1")
        for k in range(4):
            a("buffer_store_dwordx4 v[%d:%d], off, s[%d:%d], s%d offset:%d" % (vX + 4 * k, vX + 4 * k + 3, sK, sK + 3, sTmp, 16 * k))
    a("L_end:")
    a("s_endpgm")

    lds = W * 2048 + W * 32
    nfv = nv
    acc = 256 if use_agpr else (nv + 3) // 4 * 4
    txt = HEADER
    txt += "; @launch grid=(256,1,1) block=(%d,1,1) lds=%d\n" % (W * 64, lds)
    txt += '.amdgcn_target "amdgcn-amd-amdhsa--gfx950"\n.text\n.globl %s_kernel\n.p2align 8\n.type %s_kernel,@function\n%s_kernel:\n' % (NAME, NAME, NAME)
    txt += a.text()
    txt += """.section .rodata,"a"
.p2align 6
.amdhsa_kernel %s_kernel
  .amdhsa_next_free_vgpr %d
  .amdhsa_next_free_sgpr 80
  .amdhsa_accum_offset %d
  .amdhsa_group_segment_fixed_size 0
  .amdhsa_kernarg_size 72
  .amdhsa_user_sgpr_count 2
  .amdhsa_user_sgpr_kernarg_segment_ptr 1
  .amdhsa_system_sgpr_workgroup_id_x 1
.end_amdhsa_kernel
""" % (NAME, nfv, acc)
    return txt


if __name__ == "__main__":
    p = argparse.ArgumentParser()
    p.add_argument("-W", type=int, default=8)
    p.add_argument("-D", type=int, default=3)
    p.add_argument("--NB", type=int, default=2)
    p.add_argument("--order", default="inter")
    p.add_argument("--kpol", default="")
    p.add_argument("--vpol", default="")
    p.add_argument("--stamp", action="store_true")
    p.add_argument("-o", default="cdna_kernels/%s.s" % NAME)
    args = p.parse_args()
    open(args.o, "w").write(gen(args.W, args.D, args.NB, args.order, args.kpol, args.vpol, args.stamp))
```

```python
import sys, argparse, math
sys.path.insert(0, "gen")
from asmlib import Asm

NAME = "standalone__tree_speculative_verify_tree_attention_over_candidate_token_tree__sampling"
HEADER = open("cdna_kernels/%s.s.ref" % NAME).read().split("; Override launch")[0]


def f2u(x):
    import struct
    return struct.unpack("<I", struct.pack("<f", x))[0]


def gen(W=8, D=3, NB=2, order="inter", kpol="", vpol="", stamp=False, diag=None):
    a = Asm()
    TK = 16 * NB
    TB = TK * 256
    NT = 2048 // TK // W
    sK, sV, sQ, sT = 24, 28, 32, 36
    sPair, sHalf, sWave, sC = 40, 41, 42, 43
    sOffK, sOffV = 44, 46
    sTmp = 48
    vKo, vVo, vM0, vM1, vM, vL, vT0, vT1, vAl, vMc = 1, 2, 3, 4, 5, 6, 7, 8, 9, 10
    vLane = 11
    base = 12
    vQ = base; base += 16
    vS = base; base += 4 * NB
    vP = base; base += 8 * NB
    vO = base; base += 8
    vStg = base
    STG = 32 * NB
    nv = vStg + D * STG
    assert nv <= 512
    use_agpr = nv > 256

    def reg(i, n):
        if i >= 256:
            return "a[%d:%d]" % (i - 256, i - 256 + n - 1)
        assert i + n <= 256
        return "v[%d:%d]" % (i, i + n - 1)

    if use_agpr:
        assert (256 - vStg) % 4 == 0

    vm = []

    def issue(tag, text):
        a(text)
        vm.append(tag)

    def wait(tag):
        last = max(i for i, t in enumerate(vm) if t == tag)
        n = len(vm) - 1 - last
        assert n <= 63
        a("s_waitcnt vmcnt(%d)" % n)
        del vm[: last + 1]

    a("s_cmp_ge_u32 s2, 256")
    a("s_cbranch_scc1 L_end")
    a("s_load_dwordx16 s[4:19], s[0:1], 0")
    a("s_load_dwordx2 s[20:21], s[0:1], 64")
    if stamp:
        a("s_memrealtime s[60:61]")
    a("v_lshrrev_b32 v%d, 6, v0" % vT0)
    a("v_and_b32 v%d, 63, v0" % vLane)
    a("v_readfirstlane_b32 s%d, v%d" % (sWave, vT0))
    a("s_lshr_b32 s%d, s2, 1" % sPair)
    a("s_and_b32 s%d, s2, 1" % sHalf)
    a("v_and_b32 v%d, 3, v%d" % (vT0, vLane))
    a("v_lshlrev_b32 v%d, 10, v%d" % (vKo, vT0))
    a("v_bfe_u32 v%d, v%d, 2, 2" % (vT1, vLane))
    a("v_lshl_add_u32 v%d, v%d, 8, v%d" % (vKo, vT1, vKo))
    a("v_lshrrev_b32 v%d, 4, v%d" % (vAl, vLane))
    a("v_lshl_add_u32 v%d, v%d, 4, v%d" % (vKo, vAl, vKo))
    a("v_lshlrev_b32 v%d, 4, v%d" % (vVo, vLane))
    a("v_lshlrev_b32 v%d, 8, v%d" % (vMc, vT1))
    a("v_lshl_add_u32 v%d, v%d, 4, v%d" % (vMc, vAl, vMc))
    a("s_lshl_b32 s%d, s2, 19" % sOffK)
    if order == "inter":
        a("s_mul_i32 s%d, s%d, %d" % (sTmp, sWave, TB))
        step = TB * W
    else:
        a("s_mul_i32 s%d, s%d, %d" % (sTmp, sWave, TB * NT))
        step = TB
    a("s_add_u32 s%d, s%d, s%d" % (sOffK, sOffK, sTmp))
    a("s_mov_b32 s%d, s%d" % (sOffV, sOffK))
    a("s_mov_b32 s%d, 0x8000000" % (sK + 2))
    a("s_mov_b32 s%d, 0x20000" % (sK + 3))
    a("s_mov_b32 s%d, 0x8000000" % (sV + 2))
    a("s_mov_b32 s%d, 0x20000" % (sV + 3))
    a("s_mov_b32 s%d, 0x20000" % (sQ + 2))
    a("s_mov_b32 s%d, 0x20000" % (sQ + 3))
    a("s_lshl_b32 s%d, s%d, 10" % (sTmp, sPair))
    a("s_waitcnt lgkmcnt(0)")
    a("s_mov_b32 s%d, s6" % sK)
    a("s_mov_b32 s%d, s7" % (sK + 1))
    a("s_mov_b32 s%d, s8" % sV)
    a("s_mov_b32 s%d, s9" % (sV + 1))
    a("s_mov_b32 s%d, s4" % sQ)
    a("s_mov_b32 s%d, s5" % (sQ + 1))

    def loadK(i):
        st = vStg + (i % D) * STG
        for b in range(NB):
            if b > 0:
                a("s_add_u32 s%d, s%d, %d" % (sOffK + 1, sOffK, b * 4096))
            so = sOffK + (1 if b > 0 else 0)
            for dq in range(4):
                r = st + (b * 4 + dq) * 4
                issue("K%d" % i, "buffer_load_dwordx4 %s, v%d, s[%d:%d], s%d offen offset:%d %s" %
                      (reg(r, 4), vKo, sK, sK + 3, so, dq * 64, kpol))
        a("s_add_u32 s%d, s%d, %d" % (sOffK, sOffK, step))

    def loadV(i):
        st = vStg + (i % D) * STG + 16 * NB
        for b in range(NB):
            if b > 0:
                a("s_add_u32 s%d, s%d, %d" % (sOffV + 1, sOffV, b * 4096))
            so = sOffV + (1 if b > 0 else 0)
            for r4 in range(4):
                r = st + (b * 4 + r4) * 4
                issue("V%d" % i, "buffer_load_dwordx4 %s, v%d, s[%d:%d], s%d offen offset:%d %s" %
                      (reg(r, 4), vVo, sV, sV + 3, so, r4 * 1024, vpol))
        a("s_add_u32 s%d, s%d, %d" % (sOffV, sOffV, step))

    loadK(0)
    for dq in range(4):
        issue("K0", "buffer_load_dwordx4 v[%d:%d], v%d, s[%d:%d], s%d offen offset:%d" %
              (vQ + dq * 4, vQ + dq * 4 + 3, vMc, sQ, sQ + 3, sTmp, dq * 64))
    loadV(0)
    for i in range(1, min(D, NT)):
        loadK(i)
        loadV(i)
    a("v_and_b32 v%d, 1, v%d" % (vM0, vLane))
    a("v_lshlrev_b32 v%d, 4, v%d" % (vM0, vM0))
    a("v_mov_b32 v%d, 0xffff" % vM1)
    a("v_lshlrev_b32 v%d, v%d, v%d" % (vT1, vM0, vM1))
    a("v_cmp_gt_u32 vcc, 2, v%d" % vT0)
    a("v_cndmask_b32 v%d, 0, v%d, vcc" % (vM0, vT1))
    a("v_xor_b32 v%d, v%d, v%d" % (vM1, vM0, vT1))
    a("v_mov_b32 v%d, 0xff800000" % vM)
    a("v_mov_b32 v%d, 0" % vL)
    for r in range(8):
        a("v_mov_b32 v%d, 0" % (vO + r))
    c = (128 ** -0.5) * math.log2(math.e)
    a("s_mov_b32 s%d, 0x%08x" % (sC, f2u(c)))

    for i in range(NT):
        a("; ---- tile %d" % i)
        st = vStg + (i % D) * STG
        wait("K%d" % i)
        if stamp and i == 0:
            a("s_memrealtime s[62:63]")
        for dq in range(4):
            for b in range(NB):
                r = st + (b * 4 + dq) * 4
                d = "v[%d:%d]" % (vS + 4 * b, vS + 4 * b + 3)
                a("v_mfma_f32_16x16x32_bf16 %s, %s, v[%d:%d], %s" %
                  (d, reg(r, 4), vQ + dq * 4, vQ + dq * 4 + 3, "0" if dq == 0 else d))
        if i + D < NT:
            loadK(i + D)
        n = 4 * NB
        a("v_max3_f32 v%d, v%d, v%d, v%d" % (vT0, vS, vS + 1, vM))
        k = 2
        while k + 1 < n:
            a("v_max3_f32 v%d, v%d, v%d, v%d" % (vT0, vS + k, vS + k + 1, vT0))
            k += 2
        a("v_mov_b32 v%d, v%d" % (vT1, vT0))
        a("v_permlane32_swap_b32 v%d, v%d" % (vT0, vT1))
        a("v_max_f32 v%d, v%d, v%d" % (vT0, vT0, vT1))
        a("v_mov_b32 v%d, v%d" % (vT1, vT0))
        a("v_permlane16_swap_b32 v%d, v%d" % (vT0, vT1))
        a("v_max_f32 v%d, v%d, v%d" % (vT0, vT0, vT1))
        a("v_sub_f32 v%d, v%d, v%d" % (vAl, vM, vT0))
        a("v_mul_f32 v%d, s%d, v%d" % (vMc, sC, vT0))
        a("v_mul_f32 v%d, s%d, v%d" % (vAl, sC, vAl))
        a("v_mov_b32 v%d, v%d" % (vM, vT0))
        a("v_exp_f32 v%d, v%d" % (vAl, vAl))
        for k in range(n):
            a("v_fma_f32 v%d, v%d, s%d, -v%d" % (vS + k, vS + k, sC, vMc))
        for k in range(n):
            a("v_exp_f32 v%d, v%d" % (vS + k, vS + k))
        for r in range(8):
            a("v_mul_f32 v%d, v%d, v%d" % (vO + r, vO + r, vAl))
        a("v_mul_f32 v%d, v%d, v%d" % (vL, vL, vAl))
        for k in range(n):
            a("v_cvt_pk_bf16_f32 v%d, v%d, v%d" % (vP + 2 * k + 1, vS + k, vS + k))
            a("v_add_f32 v%d, v%d, v%d" % (vL, vL, vS + k))
        for k in range(n):
            a("v_and_b32 v%d, v%d, v%d" % (vP + 2 * k, vP + 2 * k + 1, vM0))
            a("v_and_b32 v%d, v%d, v%d" % (vP + 2 * k + 1, vP + 2 * k + 1, vM1))
        wait("V%d" % i)
        sv = st + 16 * NB
        for k in range(n):
            for u in range(2):
                r = sv + k * 4 + 2 * u
                d = "v[%d:%d]" % (vO + 4 * u, vO + 4 * u + 3)
                a("v_mfma_f32_16x16x16_bf16 %s, %s, v[%d:%d], %s" % (d, reg(r, 2), vP + 2 * k, vP + 2 * k + 1, d))
        if i + D < NT:
            loadV(i + D)
    if stamp:
        a("s_memrealtime s[64:65]")
    vX = vStg
    vTq, vTk, vTv, vTm = vX, vX + 4, vX + 8, vX + 12
    a("s_cmp_lg_u32 s%d, 0" % sWave)
    a("s_cbranch_scc1 L_notree")
    a("v_and_b32 v%d, 15, v%d" % (vT0, vLane))
    a("v_lshlrev_b32 v%d, 4, v%d" % (vT0, vT0))
    a("s_lshl_b32 s%d, s%d, 10" % (sTmp, sPair))
    a("buffer_load_dwordx4 v[%d:%d], v%d, s[%d:%d], s%d offen" % (vTq, vTq + 3, vVo, sQ, sQ + 3, sTmp))
    a("s_mov_b32 s%d, s10" % sT)
    a("s_mov_b32 s%d, s11" % (sT + 1))
    a("s_mov_b32 s%d, 0x8000" % (sT + 2))
    a("s_mov_b32 s%d, 0x20000" % (sT + 3))
    a("s_lshl_b32 s%d, s%d, 8" % (sTmp, sPair))
    a("buffer_load_dwordx4 v[%d:%d], v%d, s[%d:%d], s%d offen" % (vTk, vTk + 3, vT0, sT, sT + 3, sTmp))
    a("s_mov_b32 s%d, s12" % sK)
    a("s_mov_b32 s%d, s13" % (sK + 1))
    a("s_mov_b32 s%d, 0x8000" % (sK + 2))
    a("buffer_load_dwordx4 v[%d:%d], v%d, s[%d:%d], s%d offen" % (vTv, vTv + 3, vT0, sK, sK + 3, sTmp))
    a("s_mov_b32 s%d, s14" % sV)
    a("s_mov_b32 s%d, s15" % (sV + 1))
    a("s_mov_b32 s%d, 32" % (sV + 2))
    a("s_lshr_b32 s%d, s%d, 3" % (sTmp, sPair))
    a("s_lshl_b32 s%d, s%d, 1" % (sTmp, sTmp))
    a("buffer_load_ushort v%d, off, s[%d:%d], s%d" % (vTm, sV, sV + 3, sTmp))
    a("L_notree:")
    a("v_mov_b32 v%d, v%d" % (vT1, vL))
    a("v_permlane32_swap_b32 v%d, v%d" % (vL, vT1))
    a("v_add_f32 v%d, v%d, v%d" % (vL, vL, vT1))
    a("v_mov_b32 v%d, v%d" % (vT1, vL))
    a("v_permlane16_swap_b32 v%d, v%d" % (vL, vT1))
    a("v_add_f32 v%d, v%d, v%d" % (vAl, vL, vT1))
    assert vT1 % 2 == 0 and vAl == vT1 + 1
    a("v_mov_b32 v%d, v%d" % (vT1, vMc))
    ML = W * 2048
    a("v_bfe_u32 v%d, v%d, 2, 2" % (vT0, vLane))
    a("s_lshl_b32 s%d, s%d, 5" % (sTmp, sWave))
    a("v_lshl_add_u32 v%d, v%d, 3, s%d" % (vM0, vT0, sTmp))
    a("ds_write_b64 v%d, v[%d:%d] offset:%d" % (vM0, vT1, vT1 + 1, ML))
    a("v_lshlrev_b32 v%d, 9, v%d" % (vM1, vT0))
    a("v_lshrrev_b32 v%d, 4, v%d" % (vT0, vLane))
    a("v_lshl_add_u32 v%d, v%d, 7, v%d" % (vM1, vT0, vM1))
    a("v_and_b32 v%d, 3, v%d" % (vT0, vLane))
    a("v_lshl_add_u32 v%d, v%d, 2, v%d" % (vM1, vT0, vM1))
    a("s_lshl_b32 s%d, s%d, 11" % (sTmp, sWave))
    a("v_add_u32 v%d, s%d, v%d" % (vM1, sTmp, vM1))
    for r in range(4):
        a("ds_write2_b32 v%d, v%d, v%d offset0:%d offset1:%d" % (vM1, vO + r, vO + 4 + r, r * 8, r * 8 + 4))
    a("s_waitcnt lgkmcnt(0)")
    a("s_barrier")
    a("s_cmp_lg_u32 s%d, 0" % sWave)
    a("s_cbranch_scc1 L_end")
    vML = vX + 16
    vOW = vML + 2 * W
    assert vOW + 8 * W <= 256
    a("v_lshrrev_b32 v%d, 4, v%d" % (vT0, vLane))
    a("v_lshlrev_b32 v%d, 3, v%d" % (vM0, vT0))
    a("v_lshlrev_b32 v%d, 5, v%d" % (vM1, vLane))
    for w in range(W):
        a("ds_read_b64 v[%d:%d], v%d offset:%d" % (vML + 2 * w, vML + 2 * w + 1, vM0, ML + w * 32))
    for w in range(W):
        a("ds_read_b128 v[%d:%d], v%d offset:%d" % (vOW + 8 * w, vOW + 8 * w + 3, vM1, w * 2048))
        a("ds_read_b128 v[%d:%d], v%d offset:%d" % (vOW + 8 * w + 4, vOW + 8 * w + 7, vM1, w * 2048 + 16))
    a("s_waitcnt vmcnt(0)")
    a("v_mov_b32 v%d, 0" % vL)
    for k in range(4):
        a("v_lshlrev_b32 v%d, 16, v%d" % (vT0, vTq + k))
        a("v_lshlrev_b32 v%d, 16, v%d" % (vT1, vTk + k))
        a("v_fmac_f32 v%d, v%d, v%d" % (vL, vT0, vT1))
        a("v_and_b32 v%d, 0xffff0000, v%d" % (vT0, vTq + k))
        a("v_and_b32 v%d, 0xffff0000, v%d" % (vT1, vTk + k))
        a("v_fmac_f32 v%d, v%d, v%d" % (vL, vT0, vT1))
    for sh in (8, 4, 2, 1):
        a("v_add_f32_dpp v%d, v%d, v%d row_ror:%d row_mask:0xf bank_mask:0xf" % (vL, vL, vL, sh))
    a("v_lshlrev_b32 v%d, 16, v%d" % (vTm, vTm))
    a("v_sub_f32 v%d, 1.0, v%d" % (vTm, vTm))
    a("v_mul_f32 v%d, 0x%08x, v%d" % (vTm, f2u(-1e9 * math.log2(math.e)), vTm))
    a("v_fma_f32 v%d, v%d, s%d, v%d" % (vTm, vL, sC, vTm))
    a("s_cmp_eq_u32 s%d, 0" % sHalf)
    a("s_cbranch_scc1 L_keeptree")
    a("v_mov_b32 v%d, 0xff800000" % vTm)
    a("L_keeptree:")
    for k in range(4):
        a("v_lshlrev_b32 v%d, 16, v%d" % (vO + 2 * k, vTv + k))
        a("v_and_b32 v%d, 0xffff0000, v%d" % (vO + 2 * k + 1, vTv + k))
    a("s_waitcnt lgkmcnt(%d)" % min(15, 2 * W))
    a("v_max_f32 v%d, v%d, v%d" % (vM, vTm, vML))
    for w in range(1, W):
        a("v_max_f32 v%d, v%d, v%d" % (vM, vM, vML + 2 * w))
    a("v_sub_f32 v%d, v%d, v%d" % (vTm, vTm, vM))
    a("v_exp_f32 v%d, v%d" % (vL, vTm))
    for w in range(W):
        a("v_sub_f32 v%d, v%d, v%d" % (vML + 2 * w, vML + 2 * w, vM))
    for w in range(W):
        a("v_exp_f32 v%d, v%d" % (vML + 2 * w, vML + 2 * w))
    for r in range(8):
        a("v_mul_f32 v%d, v%d, v%d" % (vO + r, vO + r, vL))
    for w in range(W):
        a("v_fmac_f32 v%d, v%d, v%d" % (vL, vML + 2 * w, vML + 2 * w + 1))
    for w in range(W):
        a("s_waitcnt lgkmcnt(%d)" % min(15, 2 * (W - 1 - w)))
        for r in range(8):
            a("v_fmac_f32 v%d, v%d, v%d" % (vO + r, vOW + 8 * w + r, vML + 2 * w))
    a("v_mov_b32 v%d, v%d" % (vT1, vM))
    a("v_mov_b32 v%d, v%d" % (vT1 + 1, vL))
    if stamp:
        a("s_memrealtime s[66:67]")
    a("s_mov_b32 s%d, s20" % sK)
    a("s_mov_b32 s%d, s21" % (sK + 1))
    a("s_mov_b32 s%d, 0x200000" % (sK + 2))
    a("s_lshl_b32 s%d, s2, 12" % sTmp)
    a("v_lshlrev_b32 v%d, 3, v%d" % (vT0, vLane))
    a("buffer_store_dwordx4 v[%d:%d], v%d, s[%d:%d], s%d offen sc0 sc1" % (vO, vO + 3, vVo, sK, sK + 3, sTmp))
    a("buffer_store_dwordx4 v[%d:%d], v%d, s[%d:%d], s%d offen offset:1024 sc0 sc1" % (vO + 4, vO + 7, vVo, sK, sK + 3, sTmp))
    a("buffer_store_dwordx2 v[%d:%d], v%d, s[%d:%d], s%d offen offset:2048 sc0 sc1" % (vT1, vT1 + 1, vT0, sK, sK + 3, sTmp))
    a("s_mov_b32 s%d, s18" % sV)
    a("s_mov_b32 s%d, s19" % (sV + 1))
    a("s_mov_b32 s%d, 256" % (sV + 2))
    a("s_and_b32 s%d, s%d, 1" % (sOffK, sPair))
    a("s_lshl_b32 s%d, s%d, 4" % (sOffK, sOffK))
    a("s_lshl_b32 s%d, 1, s%d" % (sOffK + 1, sOffK))
    a("v_mov_b32 v%d, s%d" % (vM0, sOffK + 1))
    a("s_lshr_b32 s%d, s%d, 1" % (sOffV, sPair))
    a("s_lshl_b32 s%d, s%d, 2" % (sOffV, sOffV))
    a("s_waitcnt vmcnt(0)")
    a("s_mov_b64 exec, 1")
    a("buffer_atomic_add v%d, off, s[%d:%d], s%d sc0 sc1" % (vM0, sV, sV + 3, sOffV))
    a("s_waitcnt vmcnt(0)")
    a("v_readfirstlane_b32 s%d, v%d" % (sOffV + 1, vM0))
    a("s_mov_b64 exec, -1")
    a("s_lshr_b32 s%d, s%d, s%d" % (sOffV + 1, sOffV + 1, sOffK))
    a("s_and_b32 s%d, s%d, 0xffff" % (sOffV + 1, sOffV + 1))
    if stamp:
        a("s_memrealtime s[68:69]")
    a("s_cmp_eq_u32 s%d, 0" % (sOffV + 1))
    a("s_cbranch_scc1 L_stamp")
    a("s_xor_b32 s%d, s%d, 0x1000" % (sTmp, sTmp))
    vB = vX
    a("buffer_load_dwordx2 v[%d:%d], v%d, s[%d:%d], s%d offen offset:2048 sc0 sc1" % (vB + 8, vB + 9, vT0, sK, sK + 3, sTmp))
    a("buffer_load_dwordx4 v[%d:%d], v%d, s[%d:%d], s%d offen sc0 sc1" % (vB, vB + 3, vVo, sK, sK + 3, sTmp))
    a("buffer_load_dwordx4 v[%d:%d], v%d, s[%d:%d], s%d offen offset:1024 sc0 sc1" % (vB + 4, vB + 7, vVo, sK, sK + 3, sTmp))
    a("s_mov_b32 s%d, s16" % sQ)
    a("s_mov_b32 s%d, s17" % (sQ + 1))
    a("s_lshl_b32 s%d, s%d, 10" % (sTmp, sPair))
    a("s_waitcnt vmcnt(2)")
    a("v_max_f32 v%d, v%d, v%d" % (vT0, vM, vB + 8))
    a("v_sub_f32 v%d, v%d, v%d" % (vM, vM, vT0))
    a("v_sub_f32 v%d, v%d, v%d" % (vB + 8, vB + 8, vT0))
    a("v_exp_f32 v%d, v%d" % (vM, vM))
    a("v_exp_f32 v%d, v%d" % (vB + 8, vB + 8))
    a("v_mul_f32 v%d, v%d, v%d" % (vL, vL, vM))
    a("v_fmac_f32 v%d, v%d, v%d" % (vL, vB + 9, vB + 8))
    a("v_rcp_f32 v%d, v%d" % (vL, vL))
    a("v_mul_f32 v%d, v%d, v%d" % (vM, vM, vL))
    a("v_mul_f32 v%d, v%d, v%d" % (vB + 8, vB + 8, vL))
    for r in range(8):
        a("v_mul_f32 v%d, v%d, v%d" % (vO + r, vO + r, vM))
    a("s_waitcnt vmcnt(0)")
    for r in range(8):
        a("v_fmac_f32 v%d, v%d, v%d" % (vO + r, vB + r, vB + 8))
    for k in range(4):
        a("v_cvt_pk_bf16_f32 v%d, v%d, v%d" % (vB + k, vO + 2 * k, vO + 2 * k + 1))
    a("buffer_store_dwordx4 v[%d:%d], v%d, s[%d:%d], s%d offen" % (vB, vB + 3, vVo, sQ, sQ + 3, sTmp))
    a("L_stamp:")
    if stamp:
        a("s_waitcnt vmcnt(0)")
        a("s_memrealtime s[70:71]")
        a("s_getreg_b32 s72, hwreg(HW_REG_XCC_ID)")
        a("s_getreg_b32 s73, hwreg(HW_REG_HW_ID)")
        a("s_waitcnt lgkmcnt(0)")
        for k in range(14):
            a("v_mov_b32 v%d, s%d" % (vX + k, 60 + k))
        a("s_lshl_b32 s%d, s2, 6" % sTmp)
        a("s_add_u32 s%d, s%d, 0x100000" % (sTmp, sTmp))
        a("s_mov_b64 exec, 1")
        for k in range(4):
            a("buffer_store_dwordx4 v[%d:%d], off, s[%d:%d], s%d offset:%d" % (vX + 4 * k, vX + 4 * k + 3, sK, sK + 3, sTmp, 16 * k))
    if diag is not None:
        idx, mult = diag
        a("s_sub_u32 s74, s%d, s60" % (60 + 2 * idx))
        a("s_mul_i32 s74, s74, %d" % mult)
        a("s_add_u32 s74, s74, 10000")
        a("L_spin:")
        a("s_memrealtime s[76:77]")
        a("s_waitcnt lgkmcnt(0)")
        a("s_sub_u32 s76, s76, s60")
        a("s_cmp_lt_u32 s76, s74")
        a("s_cbranch_scc1 L_spin")
    a("L_end:")
    a("s_endpgm")

    lds = W * 2048 + W * 32
    nfv = nv
    acc = 256 if use_agpr else (nv + 3) // 4 * 4
    txt = HEADER
    txt += "; @launch grid=(256,1,1) block=(%d,1,1) lds=%d\n" % (W * 64, lds)
    txt += '.amdgcn_target "amdgcn-amd-amdhsa--gfx950"\n.text\n.globl %s_kernel\n.p2align 8\n.type %s_kernel,@function\n%s_kernel:\n' % (NAME, NAME, NAME)
    txt += a.text()
    txt += """.section .rodata,"a"
.p2align 6
.amdhsa_kernel %s_kernel
  .amdhsa_next_free_vgpr %d
  .amdhsa_next_free_sgpr 80
  .amdhsa_accum_offset %d
  .amdhsa_group_segment_fixed_size 0
  .amdhsa_kernarg_size 72
  .amdhsa_user_sgpr_count 2
  .amdhsa_user_sgpr_kernarg_segment_ptr 1
  .amdhsa_system_sgpr_workgroup_id_x 1
.end_amdhsa_kernel
""" % (NAME, nfv, acc)
    return txt


if __name__ == "__main__":
    p = argparse.ArgumentParser()
    p.add_argument("-W", type=int, default=8)
    p.add_argument("-D", type=int, default=3)
    p.add_argument("--NB", type=int, default=2)
    p.add_argument("--order", default="inter")
    p.add_argument("--kpol", default="")
    p.add_argument("--vpol", default="")
    p.add_argument("--stamp", action="store_true")
    p.add_argument("--diag", default=None)
    p.add_argument("-o", default="cdna_kernels/%s.s" % NAME)
    args = p.parse_args()
    open(args.o, "w").write(gen(args.W, args.D, args.NB, args.order, args.kpol, args.vpol, args.stamp, tuple(map(int, args.diag.split(","))) if args.diag else None))
```

```python
import sys, argparse, math, struct
sys.path.insert(0, "gen")
from asmlib import Asm, Ins

NAME = "standalone__tree_speculative_verify_tree_attention_over_candidate_token_tree__sampling"
HEADER = open("cdna_kernels/%s.s.ref" % NAME).read().split("; Override launch")[0]


def f2u(x):
    return struct.unpack("<I", struct.pack("<f", x))[0]


def gen(win=(5,), tailwin=(5,), ntail=2, order="inter", pol="nt", stamp=False, diag=None):
    W = 4
    NT = 32
    a = Asm()
    sK, sV, sQ, sT = 24, 28, 32, 36
    sPair, sHalf, sWave, sC, sOff, sCnt, sTmp, sTmp2, sTmp3 = 40, 41, 42, 43, 44, 45, 46, 47, 48
    vKo, vVo, vM0, vM1, vM, vL, vT0, vT1, vAl, vMc, vLane = 1, 2, 3, 4, 5, 6, 7, 8, 9, 10, 11
    vQ = 12
    vD = 20
    vS = 28
    vP = 32
    vO = 40
    vTq, vTk, vTv, vTm = 48, 52, 56, 60
    vTO = 64
    vRing = 72
    vX = vRing
    nv = vRing + 64
    step = 16384 if order == "inter" else 32768

    vm = []
    state = dict(next=0)

    def wait(tag):
        if tag not in vm:
            return
        last = max(i for i, t in enumerate(vm) if t == tag)
        a("s_waitcnt vmcnt(%d)" % (len(vm) - 1 - last))
        del vm[: last + 1]

    def ring(n):
        return vRing + (n % 16) * 4

    def issue_upto(n):
        while state["next"] <= n and state["next"] < NT * 8:
            m = state["next"]
            j = m % 8
            if j == 0 and m > 0:
                a("s_add_u32 s%d, s%d, %d" % (sOff, sOff, step))
            r = ring(m)
            if j < 4:
                a("buffer_load_dwordx4 v[%d:%d], v%d, s[%d:%d], s%d offen offset:%d %s" %
                  (r, r + 3, vKo, sK, sK + 3, sOff, (j >> 1) * 2048 + (j & 1) * 128, pol))
            else:
                a("buffer_load_dwordx4 v[%d:%d], v%d, s[%d:%d], s%d offen offset:%d %s" %
                  (r, r + 3, vVo, sV, sV + 3, sOff, (j - 4) * 1024, pol))
            vm.append(m)
            state["next"] += 1

    def qk(n):
        j = n % 8
        p, i = j >> 1, j & 1
        d = "v[%d:%d]" % (vD + 4 * p, vD + 4 * p + 3)
        a("v_mfma_f32_16x16x32_bf16 %s, v[%d:%d], v[%d:%d], %s" %
          (d, ring(n), ring(n) + 3, vQ + 4 * i, vQ + 4 * i + 3, "0" if i == 0 else d))

    def pv(n):
        k = n % 8 - 4
        for u in range(2):
            r = ring(n) + 2 * u
            d = "v[%d:%d]" % (vO + 4 * u, vO + 4 * u + 3)
            a("v_mfma_f32_16x16x16_bf16 %s, v[%d:%d], v[%d:%d], %s" % (d, r, r + 1, vP + 2 * k, vP + 2 * k + 1, d))

    BC = "quad_perm:[0,0,2,2] row_mask:0xf bank_mask:0xf"

    def softmax(part):
        if part == 0:
            for k in range(4):
                a("v_add_f32_dpp v%d, v%d, v%d quad_perm:[1,0,3,2] row_mask:0xf bank_mask:0xf" %
                  (vS + k, vD + 2 * k + 1, vD + 2 * k))
            a("v_max3_f32 v%d, v%d, v%d, v%d" % (vT0, vS, vS + 1, vM))
            a("v_max3_f32 v%d, v%d, v%d, v%d" % (vT0, vS + 2, vS + 3, vT0))
            a("v_mov_b32 v%d, v%d" % (vT1, vT0))
            a("v_permlane32_swap_b32 v%d, v%d" % (vT0, vT1))
            a("v_max_f32 v%d, v%d, v%d" % (vT0, vT0, vT1))
            a("v_mov_b32 v%d, v%d" % (vT1, vT0))
            a("v_permlane16_swap_b32 v%d, v%d" % (vT0, vT1))
            a("v_max_f32 v%d, v%d, v%d" % (vT0, vT0, vT1))
        elif part == 1:
            a("v_mul_f32 v%d, s%d, v%d" % (vT1, sC, vT0))
            a("v_mov_b32 v%d, v%d" % (vM, vT0))
            a("v_sub_f32 v%d, v%d, v%d" % (vAl, vMc, vT1))
            for k in range(4):
                a("v_fma_f32 v%d, v%d, s%d, -v%d" % (vS + k, vS + k, sC, vT1))
            a("v_exp_f32 v%d, v%d" % (vAl, vAl))
            for k in range(4):
                a("v_exp_f32 v%d, v%d" % (vS + k, vS + k))
            a("v_mov_b32 v%d, v%d" % (vMc, vT1))
        elif part == 2:
            for r in range(8):
                a("v_mul_f32_dpp v%d, v%d, v%d %s" % (vO + r, vAl, vO + r, BC))
            a("v_fma_f32 v%d, v%d, v%d, v%d" % (vL, vL, vAl, vS))
            a("v_add_f32 v%d, v%d, v%d" % (vT0, vS + 1, vS + 2))
            a("v_add_f32 v%d, v%d, v%d" % (vL, vL, vS + 3))
            a("v_add_f32 v%d, v%d, v%d" % (vL, vL, vT0))
        else:
            for k in range(4):
                a("v_cvt_pk_bf16_f32 v%d, v%d, v%d" % (vS + k, vS + k, vS + k))
            for k in range(4):
                a("v_and_b32_dpp v%d, v%d, v%d %s" % (vP + 2 * k, vS + k, vM0, BC))
                a("v_and_b32_dpp v%d, v%d, v%d %s" % (vP + 2 * k + 1, vS + k, vM1, BC))

    def tree(part):
        if part < 2:
            if part == 0:
                a("v_mov_b32 v%d, 0" % (vTm + 1))
            for k in (2 * part, 2 * part + 1):
                a("v_lshlrev_b32 v%d, 16, v%d" % (vTm + 2, vTq + k))
                a("v_lshlrev_b32 v%d, 16, v%d" % (vTm + 3, vTk + k))
                a("v_fmac_f32 v%d, v%d, v%d" % (vTm + 1, vTm + 2, vTm + 3))
                a("v_and_b32 v%d, 0xffff0000, v%d" % (vTm + 2, vTq + k))
                a("v_and_b32 v%d, 0xffff0000, v%d" % (vTm + 3, vTk + k))
                a("v_fmac_f32 v%d, v%d, v%d" % (vTm + 1, vTm + 2, vTm + 3))
        elif part == 2:
            a("v_lshlrev_b32 v%d, 16, v%d" % (vTm, vTm))
            a("v_sub_f32 v%d, 1.0, v%d" % (vTm, vTm))
            a("v_mul_f32 v%d, 0x%08x, v%d" % (vTm, f2u(-1e9 * math.log2(math.e)), vTm))
            for sh in (8, 4, 2, 1):
                a("v_add_f32_dpp v%d, v%d, v%d row_ror:%d row_mask:0xf bank_mask:0xf" % (vTm + 1, vTm + 1, vTm + 1, sh))
            a("v_fma_f32 v%d, v%d, s%d, v%d" % (vTm, vTm + 1, sC, vTm))
            a("v_add_f32 v%d, s%d, v%d" % (vTm, sTmp3, vTm))
        else:
            for k in range(4):
                a("v_lshlrev_b32 v%d, 16, v%d" % (vTO + 2 * k, vTv + k))
                a("v_and_b32 v%d, 0xffff0000, v%d" % (vTO + 2 * k + 1, vTv + k))

    a("s_cmp_ge_u32 s2, 256")
    a("s_cbranch_scc1 L_end")
    a("s_load_dwordx16 s[4:19], s[0:1], 0")
    a("s_load_dwordx2 s[20:21], s[0:1], 64")
    if stamp:
        a("s_memrealtime s[60:61]")
    a("v_lshrrev_b32 v%d, 6, v0" % vT0)
    a("v_and_b32 v%d, 63, v0" % vLane)
    a("v_readfirstlane_b32 s%d, v%d" % (sWave, vT0))
    if order == "inter":
        a("s_lshr_b32 s%d, s2, 1" % sPair)
        a("s_and_b32 s%d, s2, 1" % sHalf)
        a("s_lshl_b32 s%d, s2, 19" % sOff)
    else:
        a("s_and_b32 s%d, s2, 127" % sPair)
        a("s_lshr_b32 s%d, s2, 7" % sHalf)
        a("s_lshl_b32 s%d, s%d, 20" % (sOff, sPair))
        a("s_lshl_b32 s%d, s%d, 14" % (sTmp, sHalf))
        a("s_add_u32 s%d, s%d, s%d" % (sOff, sOff, sTmp))
    a("v_and_b32 v%d, 1, v%d" % (vM0, vLane))
    a("v_lshrrev_b32 v%d, 4, v%d" % (vAl, vLane))
    a("v_lshlrev_b32 v%d, 4, v%d" % (vT1, vAl))
    a("v_lshl_add_u32 v%d, v%d, 6, v%d" % (vT1, vM0, vT1))
    a("v_bfe_u32 v%d, v%d, 2, 2" % (vT0, vLane))
    a("v_lshl_add_u32 v%d, v%d, 8, v%d" % (vMc, vT0, vT1))
    a("v_bfe_u32 v%d, v%d, 1, 1" % (vT0, vLane))
    a("v_lshl_add_u32 v%d, v%d, 10, v%d" % (vKo, vT0, vMc))
    a("v_lshlrev_b32 v%d, 4, v%d" % (vVo, vLane))
    a("s_lshl_b32 s%d, s%d, 12" % (sTmp, sWave))
    a("s_add_u32 s%d, s%d, s%d" % (sOff, sOff, sTmp))
    a("s_mov_b32 s%d, 0x8000000" % (sK + 2))
    a("s_mov_b32 s%d, 0x20000" % (sK + 3))
    a("s_mov_b32 s%d, 0x8000000" % (sV + 2))
    a("s_mov_b32 s%d, 0x20000" % (sV + 3))
    a("s_mov_b32 s%d, 0x20000" % (sQ + 2))
    a("s_mov_b32 s%d, 0x20000" % (sQ + 3))
    a("s_lshl_b32 s%d, s%d, 10" % (sTmp, sPair))
    a("s_waitcnt lgkmcnt(0)")
    a("s_mov_b32 s%d, s4" % sQ)
    a("s_mov_b32 s%d, s5" % (sQ + 1))
    a("s_mov_b32 s%d, s6" % sK)
    a("s_mov_b32 s%d, s7" % (sK + 1))
    a("s_mov_b32 s%d, s8" % sV)
    a("s_mov_b32 s%d, s9" % (sV + 1))
    for i in range(2):
        a("buffer_load_dwordx4 v[%d:%d], v%d, s[%d:%d], s%d offen offset:%d" %
          (vQ + 4 * i, vQ + 4 * i + 3, vMc, sQ, sQ + 3, sTmp, i * 128))
        vm.append("Q")
    issue_upto(win[-1] - 1)
    a("buffer_load_dwordx4 v[%d:%d], v%d, s[%d:%d], s%d offen" % (vTq, vTq + 3, vVo, sQ, sQ + 3, sTmp))
    a("v_and_b32 v%d, 0xf0, v%d" % (vT0, vVo))
    a("s_mov_b32 s%d, s10" % sT)
    a("s_mov_b32 s%d, s11" % (sT + 1))
    a("s_mov_b32 s%d, 0x8000" % (sT + 2))
    a("s_mov_b32 s%d, 0x20000" % (sT + 3))
    a("s_lshl_b32 s%d, s%d, 8" % (sTmp, sPair))
    a("buffer_load_dwordx4 v[%d:%d], v%d, s[%d:%d], s%d offen" % (vTk, vTk + 3, vT0, sT, sT + 3, sTmp))
    a("s_mov_b32 s%d, s12" % sT)
    a("s_mov_b32 s%d, s13" % (sT + 1))
    a("buffer_load_dwordx4 v[%d:%d], v%d, s[%d:%d], s%d offen" % (vTv, vTv + 3, vT0, sT, sT + 3, sTmp))
    a("s_mov_b32 s%d, s14" % sT)
    a("s_mov_b32 s%d, s15" % (sT + 1))
    a("s_mov_b32 s%d, 32" % (sT + 2))
    a("s_lshr_b32 s%d, s%d, 3" % (sTmp, sPair))
    a("s_lshl_b32 s%d, s%d, 1" % (sTmp, sTmp))
    a("buffer_load_ushort v%d, off, s[%d:%d], s%d" % (vTm, sT, sT + 3, sTmp))
    vm.extend(["T"] * 4)
    a("v_lshlrev_b32 v%d, 4, v%d" % (vM0, vM0))
    a("v_mov_b32 v%d, 0xffff" % vM1)
    a("v_lshlrev_b32 v%d, v%d, v%d" % (vT1, vM0, vM1))
    a("v_and_b32 v%d, 2, v%d" % (vT0, vLane))
    a("v_cmp_eq_u32 vcc, 0, v%d" % vT0)
    a("v_cndmask_b32 v%d, 0, v%d, vcc" % (vM0, vT1))
    a("v_xor_b32 v%d, v%d, v%d" % (vM1, vM0, vT1))
    a("v_mov_b32 v%d, 0xff800000" % vM)
    a("v_mov_b32 v%d, 0xff800000" % vMc)
    a("v_mov_b32 v%d, 0" % vL)
    for r in range(8):
        a("v_mov_b32 v%d, 0" % (vO + r))
    c = (128 ** -0.5) * math.log2(math.e)
    a("s_mov_b32 s%d, 0x%08x" % (sC, f2u(c)))
    a("s_cmp_eq_u32 s%d, 0" % sHalf)
    a("s_cselect_b32 s%d, 0, 0xff800000" % sTmp3)

    def tile(t, w, eager=False, first=False, extra=None):
        for j in range(8):
            n = t * 8 + j
            wait(n)
            if stamp and n == 0:
                a("s_memrealtime s[62:63]")
            issue_upto(n + w[n % len(w)])
            if j < 4:
                qk(n)
                if not first:
                    pv(n - 4)
                if eager and j == 3:
                    for p in range(4):
                        softmax(p)
                if extra:
                    extra(j)
            else:
                if eager:
                    pv(n)
                else:
                    softmax(j - 4)

    tile(0, win, first=True)
    tile(1, win)
    nloop = (NT - 2 - ntail) // 2
    assert 2 + 2 * nloop + ntail == NT
    a("s_mov_b32 s%d, %d" % (sCnt, nloop))
    vm_entry = [x - 16 for x in vm]
    nxt_entry = state["next"] - 16
    a("L_loop:")
    mark = len(a.lines)
    tile(2, win)
    tile(3, win)
    assert [x - 32 for x in vm] == vm_entry and state["next"] - 32 == nxt_entry
    a("s_sub_u32 s%d, s%d, 1" % (sCnt, sCnt))
    a("s_cmp_lg_u32 s%d, 0" % sCnt)
    a("s_cbranch_scc1 L_loop")
    body = a.lines[mark:]
    chk1 = Asm(); chk1.lines = list(body)
    chk2 = Asm(); chk2.lines = list(body) + list(body)
    assert 2 * len(chk1.fix()) == len(chk2.fix())
    shift = (nloop - 1) * 16
    vm[:] = [x + shift for x in vm]
    state["next"] += shift
    t0 = 2 + 2 * nloop
    for t in range(t0, NT):
        a("; ---- tail tile %d" % t)
        tile(t, tailwin, eager=(t == NT - 1), extra=(tree if t == t0 else None))
    if stamp:
        a("s_memrealtime s[64:65]")
    a("v_mov_b32 v%d, v%d" % (vT1, vL))
    a("v_permlane32_swap_b32 v%d, v%d" % (vL, vT1))
    a("v_add_f32 v%d, v%d, v%d" % (vL, vL, vT1))
    a("v_mov_b32 v%d, v%d" % (vT1, vL))
    a("v_permlane16_swap_b32 v%d, v%d" % (vL, vT1))
    a("v_add_f32 v%d, v%d, v%d" % (vAl, vL, vT1))
    assert vT1 % 2 == 0 and vAl == vT1 + 1
    a("v_mov_b32 v%d, v%d" % (vT1, vMc))
    ML = W * 2048
    a("v_and_b32 v%d, 15, v%d" % (vT0, vLane))
    a("s_lshl_b32 s%d, s%d, 7" % (sTmp, sWave))
    a("v_lshl_add_u32 v%d, v%d, 3, s%d" % (vM0, vT0, sTmp))
    a("ds_write_b64 v%d, v[%d:%d] offset:%d" % (vM0, vT1, vT1 + 1, ML))
    a("v_bfe_u32 v%d, v%d, 2, 2" % (vT0, vLane))
    a("v_lshlrev_b32 v%d, 9, v%d" % (vM1, vT0))
    a("v_lshrrev_b32 v%d, 4, v%d" % (vT0, vLane))
    a("v_lshl_add_u32 v%d, v%d, 7, v%d" % (vM1, vT0, vM1))
    a("v_and_b32 v%d, 3, v%d" % (vT0, vLane))
    a("v_lshl_add_u32 v%d, v%d, 2, v%d" % (vM1, vT0, vM1))
    a("s_lshl_b32 s%d, s%d, 11" % (sTmp, sWave))
    a("v_add_u32 v%d, s%d, v%d" % (vM1, sTmp, vM1))
    for r in range(4):
        a("ds_write2_b32 v%d, v%d, v%d offset0:%d offset1:%d" % (vM1, vO + r, vO + 4 + r, r * 8, r * 8 + 4))
    a("s_waitcnt lgkmcnt(0)")
    a("s_barrier")
    a("s_cmp_lg_u32 s%d, 0" % sWave)
    a("s_cbranch_scc1 L_end")
    vML = vX
    vOW = vML + 2 * W
    a("v_lshrrev_b32 v%d, 4, v%d" % (vT0, vLane))
    a("v_lshlrev_b32 v%d, 5, v%d" % (vM0, vT0))
    a("v_lshlrev_b32 v%d, 5, v%d" % (vM1, vLane))
    for w in range(W):
        a("ds_read_b64 v[%d:%d], v%d offset:%d" % (vML + 2 * w, vML + 2 * w + 1, vM0, ML + w * 128))
    for w in range(W):
        a("ds_read_b128 v[%d:%d], v%d offset:%d" % (vOW + 8 * w, vOW + 8 * w + 3, vM1, w * 2048))
        a("ds_read_b128 v[%d:%d], v%d offset:%d" % (vOW + 8 * w + 4, vOW + 8 * w + 7, vM1, w * 2048 + 16))
    a("s_waitcnt lgkmcnt(%d)" % (2 * W))
    a("v_max3_f32 v%d, v%d, v%d, v%d" % (vM, vTm, vML, vML + 2))
    a("v_max3_f32 v%d, v%d, v%d, v%d" % (vM, vM, vML + 4, vML + 6))
    a("v_sub_f32 v%d, v%d, v%d" % (vTm, vTm, vM))
    for w in range(W):
        a("v_sub_f32 v%d, v%d, v%d" % (vML + 2 * w, vML + 2 * w, vM))
    a("v_exp_f32 v%d, v%d" % (vL, vTm))
    for w in range(W):
        a("v_exp_f32 v%d, v%d" % (vML + 2 * w, vML + 2 * w))
    for r in range(8):
        a("v_mul_f32 v%d, v%d, v%d" % (vO + r, vTO + r, vL))
    for w in range(W):
        a("v_fmac_f32 v%d, v%d, v%d" % (vL, vML + 2 * w, vML + 2 * w + 1))
    for w in range(W):
        a("s_waitcnt lgkmcnt(%d)" % (2 * (W - 1 - w)))
        for r in range(8):
            a("v_fmac_f32 v%d, v%d, v%d" % (vO + r, vOW + 8 * w + r, vML + 2 * w))
    a("v_mov_b32 v%d, v%d" % (vT1, vM))
    a("v_mov_b32 v%d, v%d" % (vT1 + 1, vL))
    if stamp:
        a("s_memrealtime s[66:67]")
    a("s_mov_b32 s%d, s20" % sK)
    a("s_mov_b32 s%d, s21" % (sK + 1))
    a("s_mov_b32 s%d, 0x200000" % (sK + 2))
    a("s_lshl_b32 s%d, s%d, 13" % (sTmp, sPair))
    a("s_lshl_b32 s%d, s%d, 12" % (sTmp2, sHalf))
    a("s_add_u32 s%d, s%d, s%d" % (sTmp, sTmp, sTmp2))
    a("v_lshlrev_b32 v%d, 3, v%d" % (vT0, vLane))
    a("buffer_store_dwordx4 v[%d:%d], v%d, s[%d:%d], s%d offen sc0 sc1" % (vO, vO + 3, vVo, sK, sK + 3, sTmp))
    a("buffer_store_dwordx4 v[%d:%d], v%d, s[%d:%d], s%d offen offset:1024 sc0 sc1" % (vO + 4, vO + 7, vVo, sK, sK + 3, sTmp))
    a("buffer_store_dwordx2 v[%d:%d], v%d, s[%d:%d], s%d offen offset:2048 sc0 sc1" % (vT1, vT1 + 1, vT0, sK, sK + 3, sTmp))
    a("s_mov_b32 s%d, s18" % sV)
    a("s_mov_b32 s%d, s19" % (sV + 1))
    a("s_mov_b32 s%d, 256" % (sV + 2))
    a("s_and_b32 s%d, s%d, 1" % (sOff, sPair))
    a("s_lshl_b32 s%d, s%d, 4" % (sOff, sOff))
    a("s_lshl_b32 s%d, 1, s%d" % (sCnt, sOff))
    a("v_mov_b32 v%d, s%d" % (vM0, sCnt))
    a("s_lshr_b32 s%d, s%d, 1" % (sTmp2, sPair))
    a("s_lshl_b32 s%d, s%d, 2" % (sTmp2, sTmp2))
    a("s_waitcnt vmcnt(0)")
    a("s_mov_b64 exec, 1")
    a("buffer_atomic_add v%d, off, s[%d:%d], s%d sc0 sc1" % (vM0, sV, sV + 3, sTmp2))
    a("s_waitcnt vmcnt(0)")
    a("v_readfirstlane_b32 s%d, v%d" % (sCnt, vM0))
    a("s_mov_b64 exec, -1")
    a("s_lshr_b32 s%d, s%d, s%d" % (sCnt, sCnt, sOff))
    a("s_and_b32 s%d, s%d, 0xffff" % (sCnt, sCnt))
    if stamp:
        a("s_memrealtime s[68:69]")
    a("s_cmp_eq_u32 s%d, 0" % sCnt)
    a("s_cbranch_scc1 L_stamp")
    a("s_xor_b32 s%d, s%d, 0x1000" % (sTmp, sTmp))
    vB = vX
    a("buffer_load_dwordx2 v[%d:%d], v%d, s[%d:%d], s%d offen offset:2048 sc0 sc1" % (vB + 8, vB + 9, vT0, sK, sK + 3, sTmp))
    a("buffer_load_dwordx4 v[%d:%d], v%d, s[%d:%d], s%d offen sc0 sc1" % (vB, vB + 3, vVo, sK, sK + 3, sTmp))
    a("buffer_load_dwordx4 v[%d:%d], v%d, s[%d:%d], s%d offen offset:1024 sc0 sc1" % (vB + 4, vB + 7, vVo, sK, sK + 3, sTmp))
    a("s_mov_b32 s%d, s16" % sQ)
    a("s_mov_b32 s%d, s17" % (sQ + 1))
    a("s_lshl_b32 s%d, s%d, 10" % (sTmp, sPair))
    a("s_waitcnt vmcnt(2)")
    a("v_max_f32 v%d, v%d, v%d" % (vT0, vM, vB + 8))
    a("v_sub_f32 v%d, v%d, v%d" % (vM, vM, vT0))
    a("v_sub_f32 v%d, v%d, v%d" % (vB + 8, vB + 8, vT0))
    a("v_exp_f32 v%d, v%d" % (vM, vM))
    a("v_exp_f32 v%d, v%d" % (vB + 8, vB + 8))
    a("v_mul_f32 v%d, v%d, v%d" % (vL, vL, vM))
    a("v_fmac_f32 v%d, v%d, v%d" % (vL, vB + 9, vB + 8))
    a("v_rcp_f32 v%d, v%d" % (vL, vL))
    a("v_mul_f32 v%d, v%d, v%d" % (vM, vM, vL))
    a("v_mul_f32 v%d, v%d, v%d" % (vB + 8, vB + 8, vL))
    for r in range(8):
        a("v_mul_f32 v%d, v%d, v%d" % (vO + r, vO + r, vM))
    a("s_waitcnt vmcnt(0)")
    for r in range(8):
        a("v_fmac_f32 v%d, v%d, v%d" % (vO + r, vB + r, vB + 8))
    for k in range(4):
        a("v_cvt_pk_bf16_f32 v%d, v%d, v%d" % (vB + k, vO + 2 * k, vO + 2 * k + 1))
    a("buffer_store_dwordx4 v[%d:%d], v%d, s[%d:%d], s%d offen" % (vB, vB + 3, vVo, sQ, sQ + 3, sTmp))
    a("L_stamp:")
    if stamp:
        a("s_waitcnt vmcnt(0)")
        a("s_memrealtime s[70:71]")
        a("s_getreg_b32 s72, hwreg(HW_REG_XCC_ID)")
        a("s_getreg_b32 s73, hwreg(HW_REG_HW_ID)")
        a("s_waitcnt lgkmcnt(0)")
        for k in range(14):
            a("v_mov_b32 v%d, s%d" % (vX + k, 60 + k))
        a("s_lshl_b32 s%d, s2, 6" % sTmp)
        a("s_add_u32 s%d, s%d, 0x100000" % (sTmp, sTmp))
        a("s_mov_b64 exec, 1")
        for k in range(4):
            a("buffer_store_dwordx4 v[%d:%d], off, s[%d:%d], s%d offset:%d" % (vX + 4 * k, vX + 4 * k + 3, sK, sK + 3, sTmp, 16 * k))
    if diag is not None:
        idx, mult = diag
        a("s_sub_u32 s74, s%d, s60" % (60 + 2 * idx))
        a("s_mul_i32 s74, s74, %d" % mult)
        a("s_add_u32 s74, s74, 10000")
        a("L_spin:")
        a("s_memrealtime s[76:77]")
        a("s_waitcnt lgkmcnt(0)")
        a("s_sub_u32 s76, s76, s60")
        a("s_cmp_lt_u32 s76, s74")
        a("s_cbranch_scc1 L_spin")
    a("L_end:")
    a("s_endpgm")

    lds = W * 2048 + W * 128
    txt = HEADER
    txt += "; @launch grid=(256,1,1) block=(%d,1,1) lds=%d\n" % (W * 64, lds)
    txt += '.amdgcn_target "amdgcn-amd-amdhsa--gfx950"\n.text\n.globl %s_kernel\n.p2align 8\n.type %s_kernel,@function\n%s_kernel:\n' % (NAME, NAME, NAME)
    txt += a.text()
    txt += """.section .rodata,"a"
.p2align 6
.amdhsa_kernel %s_kernel
  .amdhsa_next_free_vgpr %d
  .amdhsa_next_free_sgpr 80
  .amdhsa_accum_offset %d
  .amdhsa_group_segment_fixed_size 0
  .amdhsa_kernarg_size 72
  .amdhsa_user_sgpr_count 2
  .amdhsa_user_sgpr_kernarg_segment_ptr 1
  .amdhsa_system_sgpr_workgroup_id_x 1
.end_amdhsa_kernel
""" % (NAME, nv, (nv + 3) // 4 * 4)
    return txt


def tup(s):
    return tuple(int(x) for x in s.split(","))


if __name__ == "__main__":
    p = argparse.ArgumentParser()
    p.add_argument("--win", default="5")
    p.add_argument("--tailwin", default="5")
    p.add_argument("--ntail", type=int, default=2)
    p.add_argument("--order", default="inter")
    p.add_argument("--pol", default="nt")
    p.add_argument("--stamp", action="store_true")
    p.add_argument("--diag", default=None)
    p.add_argument("-o", default="cdna_kernels/%s.s" % NAME)
    args = p.parse_args()
    open(args.o, "w").write(gen(tup(args.win), tup(args.tailwin), args.ntail, args.order, args.pol, args.stamp,
                                tup(args.diag) if args.diag else None))
```

```python
import sys, argparse, math, struct
sys.path.insert(0, "gen")
from asmlib import Asm, Ins

NAME = "standalone__tree_speculative_verify_tree_attention_over_candidate_token_tree__sampling"
HEADER = open("cdna_kernels/%s.s.ref" % NAME).read().split("; Override launch")[0]


def f2u(x):
    return struct.unpack("<I", struct.pack("<f", x))[0]


def gen(win=(5,), tailwin=(5,), ntail=2, order="inter", pol="nt", stamp=False, diag=None):
    W = 4
    NT = 32
    a = Asm()
    sK, sV, sQ, sT = 24, 28, 32, 36
    sPair, sHalf, sWave, sC, sOff, sCnt, sTmp, sTmp2, sTmp3 = 40, 41, 42, 43, 44, 45, 46, 47, 48
    vKo, vVo, vM0, vM1, vM, vL, vT0, vT1, vAl, vMc, vLane = 1, 2, 3, 4, 5, 6, 7, 8, 9, 10, 11
    vQ = 12
    vD = 20
    vS = 28
    vP = 32
    vO = 40
    vTq, vTk, vTv, vTm = 48, 52, 56, 60
    vTO = 64
    vRing = 72
    vX = vRing
    nv = vRing + 64
    step = 16384 if order == "inter" else 32768

    vm = []
    state = dict(next=0)

    def wait(tag):
        if tag not in vm:
            return
        last = max(i for i, t in enumerate(vm) if t == tag)
        a("s_waitcnt vmcnt(%d)" % (len(vm) - 1 - last))
        del vm[: last + 1]

    def ring(n):
        return vRing + (n % 16) * 4

    def issue_upto(n):
        while state["next"] <= n and state["next"] < NT * 8:
            m = state["next"]
            j = m % 8
            if j == 0 and m > 0:
                a("s_add_u32 s%d, s%d, %d" % (sOff, sOff, step))
            r = ring(m)
            if j < 4:
                a("buffer_load_dwordx4 v[%d:%d], v%d, s[%d:%d], s%d offen offset:%d %s" %
                  (r, r + 3, vKo, sK, sK + 3, sOff, (j >> 1) * 2048 + (j & 1) * 128, pol))
            else:
                a("buffer_load_dwordx4 v[%d:%d], v%d, s[%d:%d], s%d offen offset:%d %s" %
                  (r, r + 3, vVo, sV, sV + 3, sOff, (j - 4) * 1024, pol))
            vm.append(m)
            state["next"] += 1

    def qk(n):
        j = n % 8
        p, i = j >> 1, j & 1
        d = "v[%d:%d]" % (vD + 4 * p, vD + 4 * p + 3)
        a("v_mfma_f32_16x16x32_bf16 %s, v[%d:%d], v[%d:%d], %s" %
          (d, ring(n), ring(n) + 3, vQ + 4 * i, vQ + 4 * i + 3, "0" if i == 0 else d))

    def pv(n):
        k = n % 8 - 4
        for u in range(2):
            r = ring(n) + 2 * u
            d = "v[%d:%d]" % (vO + 4 * u, vO + 4 * u + 3)
            a("v_mfma_f32_16x16x16_bf16 %s, v[%d:%d], v[%d:%d], %s" % (d, r, r + 1, vP + 2 * k, vP + 2 * k + 1, d))

    BC = "quad_perm:[0,0,2,2] row_mask:0xf bank_mask:0xf"

    def softmax(part):
        if part == 0:
            for k in range(4):
                a("v_add_f32_dpp v%d, v%d, v%d quad_perm:[1,0,3,2] row_mask:0xf bank_mask:0xf" %
                  (vS + k, vD + 2 * k + 1, vD + 2 * k))
            a("v_max3_f32 v%d, v%d, v%d, v%d" % (vT0, vS, vS + 1, vM))
            a("v_max3_f32 v%d, v%d, v%d, v%d" % (vT0, vS + 2, vS + 3, vT0))
            a("v_mov_b32 v%d, v%d" % (vT1, vT0))
            a("v_permlane32_swap_b32 v%d, v%d" % (vT0, vT1))
            a("v_max_f32 v%d, v%d, v%d" % (vT0, vT0, vT1))
            a("v_mov_b32 v%d, v%d" % (vT1, vT0))
            a("v_permlane16_swap_b32 v%d, v%d" % (vT0, vT1))
            a("v_max_f32 v%d, v%d, v%d" % (vT0, vT0, vT1))
        elif part == 1:
            a("v_mul_f32 v%d, s%d, v%d" % (vT1, sC, vT0))
            a("v_mov_b32 v%d, v%d" % (vM, vT0))
            a("v_sub_f32 v%d, v%d, v%d" % (vAl, vMc, vT1))
            for k in range(4):
                a("v_fma_f32 v%d, v%d, s%d, -v%d" % (vS + k, vS + k, sC, vT1))
            a("v_exp_f32 v%d, v%d" % (vAl, vAl))
            for k in range(4):
                a("v_exp_f32 v%d, v%d" % (vS + k, vS + k))
            a("v_mov_b32 v%d, v%d" % (vMc, vT1))
        elif part == 2:
            for r in range(8):
                a("v_mul_f32_dpp v%d, v%d, v%d %s" % (vO + r, vAl, vO + r, BC))
            a("v_fma_f32 v%d, v%d, v%d, v%d" % (vL, vL, vAl, vS))
            a("v_add_f32 v%d, v%d, v%d" % (vT0, vS + 1, vS + 2))
            a("v_add_f32 v%d, v%d, v%d" % (vL, vL, vS + 3))
            a("v_add_f32 v%d, v%d, v%d" % (vL, vL, vT0))
        else:
            for k in range(4):
                a("v_cvt_pk_bf16_f32 v%d, v%d, v%d" % (vS + k, vS + k, vS + k))
            for k in range(4):
                a("v_and_b32_dpp v%d, v%d, v%d %s" % (vP + 2 * k, vS + k, vM0, BC))
                a("v_and_b32_dpp v%d, v%d, v%d %s" % (vP + 2 * k + 1, vS + k, vM1, BC))

    def tree(part):
        if part < 2:
            if part == 0:
                a("v_mov_b32 v%d, 0" % (vTm + 1))
            for k in (2 * part, 2 * part + 1):
                a("v_lshlrev_b32 v%d, 16, v%d" % (vTm + 2, vTq + k))
                a("v_lshlrev_b32 v%d, 16, v%d" % (vTm + 3, vTk + k))
                a("v_fmac_f32 v%d, v%d, v%d" % (vTm + 1, vTm + 2, vTm + 3))
                a("v_and_b32 v%d, 0xffff0000, v%d" % (vTm + 2, vTq + k))
                a("v_and_b32 v%d, 0xffff0000, v%d" % (vTm + 3, vTk + k))
                a("v_fmac_f32 v%d, v%d, v%d" % (vTm + 1, vTm + 2, vTm + 3))
        elif part == 2:
            a("v_lshlrev_b32 v%d, 16, v%d" % (vTm, vTm))
            a("v_sub_f32 v%d, 1.0, v%d" % (vTm, vTm))
            a("v_mul_f32 v%d, 0x%08x, v%d" % (vTm, f2u(-1e9 * math.log2(math.e)), vTm))
            for sh in (8, 4, 2, 1):
                a("v_add_f32_dpp v%d, v%d, v%d row_ror:%d row_mask:0xf bank_mask:0xf" % (vTm + 1, vTm + 1, vTm + 1, sh))
            a("v_fma_f32 v%d, v%d, s%d, v%d" % (vTm, vTm + 1, sC, vTm))
            a("v_add_f32 v%d, s%d, v%d" % (vTm, sTmp3, vTm))
        else:
            for k in range(4):
                a("v_lshlrev_b32 v%d, 16, v%d" % (vTO + 2 * k, vTv + k))
                a("v_and_b32 v%d, 0xffff0000, v%d" % (vTO + 2 * k + 1, vTv + k))

    a("s_cmp_ge_u32 s2, 256")
    a("s_cbranch_scc1 L_end")
    a("s_load_dwordx16 s[4:19], s[0:1], 0")
    a("s_load_dwordx2 s[20:21], s[0:1], 64")
    if stamp:
        a("s_memrealtime s[60:61]")
    a("v_lshrrev_b32 v%d, 6, v0" % vT0)
    a("v_and_b32 v%d, 63, v0" % vLane)
    a("v_readfirstlane_b32 s%d, v%d" % (sWave, vT0))
    if order == "inter":
        a("s_lshr_b32 s%d, s2, 1" % sPair)
        a("s_and_b32 s%d, s2, 1" % sHalf)
        a("s_lshl_b32 s%d, s2, 19" % sOff)
    else:
        a("s_and_b32 s%d, s2, 127" % sPair)
        a("s_lshr_b32 s%d, s2, 7" % sHalf)
        a("s_lshl_b32 s%d, s%d, 20" % (sOff, sPair))
        a("s_lshl_b32 s%d, s%d, 14" % (sTmp, sHalf))
        a("s_add_u32 s%d, s%d, s%d" % (sOff, sOff, sTmp))
    a("v_and_b32 v%d, 1, v%d" % (vM0, vLane))
    a("v_lshrrev_b32 v%d, 4, v%d" % (vAl, vLane))
    a("v_lshlrev_b32 v%d, 4, v%d" % (vT1, vAl))
    a("v_lshl_add_u32 v%d, v%d, 6, v%d" % (vT1, vM0, vT1))
    a("v_bfe_u32 v%d, v%d, 2, 2" % (vT0, vLane))
    a("v_lshl_add_u32 v%d, v%d, 8, v%d" % (vMc, vT0, vT1))
    a("v_bfe_u32 v%d, v%d, 1, 1" % (vT0, vLane))
    a("v_lshl_add_u32 v%d, v%d, 10, v%d" % (vKo, vT0, vMc))
    a("v_lshlrev_b32 v%d, 4, v%d" % (vVo, vLane))
    a("s_lshl_b32 s%d, s%d, 12" % (sTmp, sWave))
    a("s_add_u32 s%d, s%d, s%d" % (sOff, sOff, sTmp))
    a("s_mov_b32 s%d, 0x8000000" % (sK + 2))
    a("s_mov_b32 s%d, 0x20000" % (sK + 3))
    a("s_mov_b32 s%d, 0x8000000" % (sV + 2))
    a("s_mov_b32 s%d, 0x20000" % (sV + 3))
    a("s_mov_b32 s%d, 0x20000" % (sQ + 2))
    a("s_mov_b32 s%d, 0x20000" % (sQ + 3))
    a("s_lshl_b32 s%d, s%d, 10" % (sTmp, sPair))
    a("s_waitcnt lgkmcnt(0)")
    a("s_mov_b32 s%d, s4" % sQ)
    a("s_mov_b32 s%d, s5" % (sQ + 1))
    a("s_mov_b32 s%d, s6" % sK)
    a("s_mov_b32 s%d, s7" % (sK + 1))
    a("s_mov_b32 s%d, s8" % sV)
    a("s_mov_b32 s%d, s9" % (sV + 1))
    for i in range(2):
        a("buffer_load_dwordx4 v[%d:%d], v%d, s[%d:%d], s%d offen offset:%d" %
          (vQ + 4 * i, vQ + 4 * i + 3, vMc, sQ, sQ + 3, sTmp, i * 128))
        vm.append("Q")
    issue_upto(win[-1] - 1)
    a("buffer_load_dwordx4 v[%d:%d], v%d, s[%d:%d], s%d offen" % (vTq, vTq + 3, vVo, sQ, sQ + 3, sTmp))
    a("v_and_b32 v%d, 0xf0, v%d" % (vT0, vVo))
    a("s_mov_b32 s%d, s10" % sT)
    a("s_mov_b32 s%d, s11" % (sT + 1))
    a("s_mov_b32 s%d, 0x8000" % (sT + 2))
    a("s_mov_b32 s%d, 0x20000" % (sT + 3))
    a("s_lshl_b32 s%d, s%d, 8" % (sTmp, sPair))
    a("buffer_load_dwordx4 v[%d:%d], v%d, s[%d:%d], s%d offen" % (vTk, vTk + 3, vT0, sT, sT + 3, sTmp))
    a("s_mov_b32 s%d, s12" % sT)
    a("s_mov_b32 s%d, s13" % (sT + 1))
    a("buffer_load_dwordx4 v[%d:%d], v%d, s[%d:%d], s%d offen" % (vTv, vTv + 3, vT0, sT, sT + 3, sTmp))
    a("s_mov_b32 s%d, s14" % sT)
    a("s_mov_b32 s%d, s15" % (sT + 1))
    a("s_mov_b32 s%d, 32" % (sT + 2))
    a("s_lshr_b32 s%d, s%d, 3" % (sTmp, sPair))
    a("s_lshl_b32 s%d, s%d, 1" % (sTmp, sTmp))
    a("buffer_load_ushort v%d, off, s[%d:%d], s%d" % (vTm, sT, sT + 3, sTmp))
    vm.extend(["T"] * 4)
    a("v_lshlrev_b32 v%d, 4, v%d" % (vM0, vM0))
    a("v_mov_b32 v%d, 0xffff" % vM1)
    a("v_lshlrev_b32 v%d, v%d, v%d" % (vT1, vM0, vM1))
    a("v_and_b32 v%d, 2, v%d" % (vT0, vLane))
    a("v_cmp_eq_u32 vcc, 0, v%d" % vT0)
    a("v_cndmask_b32 v%d, 0, v%d, vcc" % (vM0, vT1))
    a("v_xor_b32 v%d, v%d, v%d" % (vM1, vM0, vT1))
    a("v_mov_b32 v%d, 0xff800000" % vM)
    a("v_mov_b32 v%d, 0xff800000" % vMc)
    a("v_mov_b32 v%d, 0" % vL)
    for r in range(8):
        a("v_mov_b32 v%d, 0" % (vO + r))
    c = (128 ** -0.5) * math.log2(math.e)
    a("s_mov_b32 s%d, 0x%08x" % (sC, f2u(c)))
    a("s_cmp_eq_u32 s%d, 0" % sHalf)
    a("s_cselect_b32 s%d, 0, 0xff800000" % sTmp3)

    def tile(t, w, eager=False, first=False, extra=None):
        for j in range(8):
            n = t * 8 + j
            wait(n)
            if stamp and n == 0:
                a("s_memrealtime s[62:63]")
            issue_upto(n + w[n % len(w)])
            if j < 4:
                qk(n)
                if not first:
                    pv(n - 4)
                if eager and j == 3:
                    for p in range(4):
                        softmax(p)
                if extra:
                    extra(j)
            else:
                if eager:
                    pv(n)
                else:
                    softmax(j - 4)

    tile(0, win, first=True)
    tile(1, win)
    nloop = (NT - 2 - ntail) // 2
    assert 2 + 2 * nloop + ntail == NT
    a("s_mov_b32 s%d, %d" % (sCnt, nloop))
    vm_entry = [x - 16 for x in vm]
    nxt_entry = state["next"] - 16
    a("L_loop:")
    mark = len(a.lines)
    tile(2, win)
    tile(3, win)
    assert [x - 32 for x in vm] == vm_entry and state["next"] - 32 == nxt_entry
    a("s_sub_u32 s%d, s%d, 1" % (sCnt, sCnt))
    a("s_cmp_lg_u32 s%d, 0" % sCnt)
    a("s_cbranch_scc1 L_loop")
    body = a.lines[mark:]
    chk1 = Asm(); chk1.lines = list(body)
    chk2 = Asm(); chk2.lines = list(body) + list(body)
    assert 2 * len(chk1.fix()) == len(chk2.fix())
    shift = (nloop - 1) * 16
    vm[:] = [x + shift for x in vm]
    state["next"] += shift
    t0 = 2 + 2 * nloop
    for t in range(t0, NT):
        a("; ---- tail tile %d" % t)
        tile(t, tailwin, eager=(t == NT - 1), extra=(tree if t == t0 else None))
    if stamp:
        a("s_memrealtime s[64:65]")
    a("v_mov_b32 v%d, v%d" % (vT1, vL))
    a("v_permlane32_swap_b32 v%d, v%d" % (vL, vT1))
    a("v_add_f32 v%d, v%d, v%d" % (vL, vL, vT1))
    a("v_mov_b32 v%d, v%d" % (vT1, vL))
    a("v_permlane16_swap_b32 v%d, v%d" % (vL, vT1))
    a("v_add_f32 v%d, v%d, v%d" % (vAl, vL, vT1))
    assert vT1 % 2 == 0 and vAl == vT1 + 1
    a("v_mov_b32 v%d, v%d" % (vT1, vMc))
    ML = W * 2048
    a("v_and_b32 v%d, 15, v%d" % (vT0, vLane))
    a("s_lshl_b32 s%d, s%d, 7" % (sTmp, sWave))
    a("v_lshl_add_u32 v%d, v%d, 3, s%d" % (vM0, vT0, sTmp))
    a("ds_write_b64 v%d, v[%d:%d] offset:%d" % (vM0, vT1, vT1 + 1, ML))
    a("v_bfe_u32 v%d, v%d, 2, 2" % (vT0, vLane))
    a("v_lshlrev_b32 v%d, 9, v%d" % (vM1, vT0))
    a("v_lshrrev_b32 v%d, 4, v%d" % (vT0, vLane))
    a("v_lshl_add_u32 v%d, v%d, 7, v%d" % (vM1, vT0, vM1))
    a("v_and_b32 v%d, 3, v%d" % (vT0, vLane))
    a("v_lshl_add_u32 v%d, v%d, 2, v%d" % (vM1, vT0, vM1))
    a("s_lshl_b32 s%d, s%d, 11" % (sTmp, sWave))
    a("v_add_u32 v%d, s%d, v%d" % (vM1, sTmp, vM1))
    for r in range(4):
        a("ds_write2_b32 v%d, v%d, v%d offset0:%d offset1:%d" % (vM1, vO + r, vO + 4 + r, r * 8, r * 8 + 4))
    a("s_waitcnt lgkmcnt(0)")
    a("s_barrier")
    a("s_cmp_lg_u32 s%d, 0" % sWave)
    a("s_cbranch_scc1 L_end")
    vML = vX
    vOW = vML + 2 * W
    a("v_lshrrev_b32 v%d, 4, v%d" % (vT0, vLane))
    a("v_lshlrev_b32 v%d, 5, v%d" % (vM0, vT0))
    a("v_lshlrev_b32 v%d, 5, v%d" % (vM1, vLane))
    for w in range(W):
        a("ds_read_b64 v[%d:%d], v%d offset:%d" % (vML + 2 * w, vML + 2 * w + 1, vM0, ML + w * 128))
    for w in range(W):
        a("ds_read_b128 v[%d:%d], v%d offset:%d" % (vOW + 8 * w, vOW + 8 * w + 3, vM1, w * 2048))
        a("ds_read_b128 v[%d:%d], v%d offset:%d" % (vOW + 8 * w + 4, vOW + 8 * w + 7, vM1, w * 2048 + 16))
    a("s_waitcnt lgkmcnt(%d)" % (2 * W))
    a("v_max3_f32 v%d, v%d, v%d, v%d" % (vM, vTm, vML, vML + 2))
    a("v_max3_f32 v%d, v%d, v%d, v%d" % (vM, vM, vML + 4, vML + 6))
    a("v_sub_f32 v%d, v%d, v%d" % (vTm, vTm, vM))
    for w in range(W):
        a("v_sub_f32 v%d, v%d, v%d" % (vML + 2 * w, vML + 2 * w, vM))
    a("v_exp_f32 v%d, v%d" % (vL, vTm))
    for w in range(W):
        a("v_exp_f32 v%d, v%d" % (vML + 2 * w, vML + 2 * w))
    for r in range(8):
        a("v_mul_f32 v%d, v%d, v%d" % (vO + r, vTO + r, vL))
    for w in range(W):
        a("v_fmac_f32 v%d, v%d, v%d" % (vL, vML + 2 * w, vML + 2 * w + 1))
    for w in range(W):
        a("s_waitcnt lgkmcnt(%d)" % (2 * (W - 1 - w)))
        for r in range(8):
            a("v_fmac_f32 v%d, v%d, v%d" % (vO + r, vOW + 8 * w + r, vML + 2 * w))
    a("v_mov_b32 v%d, v%d" % (vT1, vM))
    a("v_mov_b32 v%d, v%d" % (vT1 + 1, vL))
    if stamp:
        a("s_memrealtime s[66:67]")
    a("s_mov_b32 s%d, s20" % sK)
    a("s_mov_b32 s%d, s21" % (sK + 1))
    a("s_mov_b32 s%d, 0x200000" % (sK + 2))
    a("s_lshl_b32 s%d, s%d, 13" % (sTmp, sPair))
    a("s_lshl_b32 s%d, s%d, 12" % (sTmp2, sHalf))
    a("s_add_u32 s%d, s%d, s%d" % (sTmp, sTmp, sTmp2))
    a("v_lshlrev_b32 v%d, 3, v%d" % (vT0, vLane))
    a("buffer_store_dwordx4 v[%d:%d], v%d, s[%d:%d], s%d offen sc0 sc1" % (vO, vO + 3, vVo, sK, sK + 3, sTmp))
    a("buffer_store_dwordx4 v[%d:%d], v%d, s[%d:%d], s%d offen offset:1024 sc0 sc1" % (vO + 4, vO + 7, vVo, sK, sK + 3, sTmp))
    a("buffer_store_dwordx2 v[%d:%d], v%d, s[%d:%d], s%d offen offset:2048 sc0 sc1" % (vT1, vT1 + 1, vT0, sK, sK + 3, sTmp))
    a("s_mov_b32 s%d, s18" % sV)
    a("s_mov_b32 s%d, s19" % (sV + 1))
    a("s_mov_b32 s%d, 256" % (sV + 2))
    a("s_and_b32 s%d, s%d, 3" % (sOff, sPair))
    a("s_lshl_b32 s%d, s%d, 3" % (sOff, sOff))
    a("s_lshl_b32 s%d, 1, s%d" % (sCnt, sOff))
    a("v_mov_b32 v%d, s%d" % (vM0, sCnt))
    a("s_and_b32 s%d, s%d, 0x7c" % (sTmp2, sPair))
    a("s_waitcnt vmcnt(0)")
    a("s_mov_b64 exec, 1")
    a("buffer_atomic_add v%d, off, s[%d:%d], s%d sc0 sc1" % (vM0, sV, sV + 3, sTmp2))
    a("s_waitcnt vmcnt(0)")
    a("v_readfirstlane_b32 s%d, v%d" % (sCnt, vM0))
    a("s_mov_b64 exec, -1")
    a("s_lshr_b32 s%d, s%d, s%d" % (sCnt, sCnt, sOff))
    a("s_and_b32 s%d, s%d, 0xff" % (sCnt, sCnt))
    if stamp:
        a("s_memrealtime s[68:69]")
    a("s_cmp_eq_u32 s%d, 0" % sCnt)
    a("s_cbranch_scc1 L_stamp")
    a("s_xor_b32 s%d, s%d, 0x1000" % (sTmp, sTmp))
    vB = vX
    a("buffer_load_dwordx2 v[%d:%d], v%d, s[%d:%d], s%d offen offset:2048 sc0 sc1" % (vB + 8, vB + 9, vT0, sK, sK + 3, sTmp))
    a("buffer_load_dwordx4 v[%d:%d], v%d, s[%d:%d], s%d offen sc0 sc1" % (vB, vB + 3, vVo, sK, sK + 3, sTmp))
    a("buffer_load_dwordx4 v[%d:%d], v%d, s[%d:%d], s%d offen offset:1024 sc0 sc1" % (vB + 4, vB + 7, vVo, sK, sK + 3, sTmp))
    a("s_mov_b32 s%d, s16" % sQ)
    a("s_mov_b32 s%d, s17" % (sQ + 1))
    a("s_lshl_b32 s%d, s%d, 10" % (sTmp, sPair))
    a("s_waitcnt vmcnt(2)")
    a("v_max_f32 v%d, v%d, v%d" % (vT0, vM, vB + 8))
    a("v_sub_f32 v%d, v%d, v%d" % (vM, vM, vT0))
    a("v_sub_f32 v%d, v%d, v%d" % (vB + 8, vB + 8, vT0))
    a("v_exp_f32 v%d, v%d" % (vM, vM))
    a("v_exp_f32 v%d, v%d" % (vB + 8, vB + 8))
    a("v_mul_f32 v%d, v%d, v%d" % (vL, vL, vM))
    a("v_fmac_f32 v%d, v%d, v%d" % (vL, vB + 9, vB + 8))
    a("v_rcp_f32 v%d, v%d" % (vL, vL))
    a("v_mul_f32 v%d, v%d, v%d" % (vM, vM, vL))
    a("v_mul_f32 v%d, v%d, v%d" % (vB + 8, vB + 8, vL))
    for r in range(8):
        a("v_mul_f32 v%d, v%d, v%d" % (vO + r, vO + r, vM))
    a("s_waitcnt vmcnt(0)")
    for r in range(8):
        a("v_fmac_f32 v%d, v%d, v%d" % (vO + r, vB + r, vB + 8))
    for k in range(4):
        a("v_cvt_pk_bf16_f32 v%d, v%d, v%d" % (vB + k, vO + 2 * k, vO + 2 * k + 1))
    a("buffer_store_dwordx4 v[%d:%d], v%d, s[%d:%d], s%d offen" % (vB, vB + 3, vVo, sQ, sQ + 3, sTmp))
    a("L_stamp:")
    if stamp:
        a("s_waitcnt vmcnt(0)")
        a("s_memrealtime s[70:71]")
        a("s_getreg_b32 s72, hwreg(HW_REG_XCC_ID)")
        a("s_getreg_b32 s73, hwreg(HW_REG_HW_ID)")
        a("s_waitcnt lgkmcnt(0)")
        for k in range(14):
            a("v_mov_b32 v%d, s%d" % (vX + k, 60 + k))
        a("s_lshl_b32 s%d, s2, 6" % sTmp)
        a("s_add_u32 s%d, s%d, 0x100000" % (sTmp, sTmp))
        a("s_mov_b64 exec, 1")
        for k in range(4):
            a("buffer_store_dwordx4 v[%d:%d], off, s[%d:%d], s%d offset:%d" % (vX + 4 * k, vX + 4 * k + 3, sK, sK + 3, sTmp, 16 * k))
    if diag is not None:
        idx, mult = diag[:2]
        if len(diag) > 2:
            a("s_not_b32 s74, s60")
            a("v_mov_b32 v%d, s74" % vM0)
            a("buffer_atomic_umax v%d, off, s[%d:%d], 0 offset:128 sc1" % (vM0, sV, sV + 3))
            a("s_waitcnt vmcnt(0)")
            a("L_pre:")
            a("s_memrealtime s[76:77]")
            a("s_waitcnt lgkmcnt(0)")
            a("s_sub_u32 s76, s76, s60")
            a("s_cmp_lt_u32 s76, 8000")
            a("s_cbranch_scc1 L_pre")
            a("buffer_load_dword v%d, off, s[%d:%d], 0 offset:128 sc0 sc1" % (vM0, sV, sV + 3))
            a("s_waitcnt vmcnt(0)")
            a("v_readfirstlane_b32 s75, v%d" % vM0)
            a("s_not_b32 s75, s75")
            a("s_mov_b32 s78, s60")
            a("s_mov_b32 s60, s75")
            if idx == 0:
                a("s_mov_b32 s62, s78")
                idx = 1
        a("s_sub_u32 s74, s%d, s60" % (60 + 2 * idx))
        a("s_mul_i32 s74, s74, %d" % mult)
        a("s_add_u32 s74, s74, 10000")
        a("L_spin:")
        a("s_memrealtime s[76:77]")
        a("s_waitcnt lgkmcnt(0)")
        a("s_sub_u32 s76, s76, s60")
        a("s_cmp_lt_u32 s76, s74")
        a("s_cbranch_scc1 L_spin")
    a("L_end:")
    a("s_endpgm")

    lds = W * 2048 + W * 128
    txt = HEADER
    txt += "; @launch grid=(256,1,1) block=(%d,1,1) lds=%d\n" % (W * 64, lds)
    txt += '.amdgcn_target "amdgcn-amd-amdhsa--gfx950"\n.text\n.globl %s_kernel\n.p2align 8\n.type %s_kernel,@function\n%s_kernel:\n' % (NAME, NAME, NAME)
    txt += a.text()
    txt += """.section .rodata,"a"
.p2align 6
.amdhsa_kernel %s_kernel
  .amdhsa_next_free_vgpr %d
  .amdhsa_next_free_sgpr 80
  .amdhsa_accum_offset %d
  .amdhsa_group_segment_fixed_size 0
  .amdhsa_kernarg_size 72
  .amdhsa_user_sgpr_count 2
  .amdhsa_user_sgpr_kernarg_segment_ptr 1
  .amdhsa_system_sgpr_workgroup_id_x 1
.end_amdhsa_kernel
""" % (NAME, nv, (nv + 3) // 4 * 4)
    return txt


def tup(s):
    return tuple(int(x) for x in s.split(","))


if __name__ == "__main__":
    p = argparse.ArgumentParser()
    p.add_argument("--win", default="5")
    p.add_argument("--tailwin", default="5")
    p.add_argument("--ntail", type=int, default=2)
    p.add_argument("--order", default="inter")
    p.add_argument("--pol", default="nt")
    p.add_argument("--stamp", action="store_true")
    p.add_argument("--diag", default=None)
    p.add_argument("-o", default="cdna_kernels/%s.s" % NAME)
    args = p.parse_args()
    open(args.o, "w").write(gen(tup(args.win), tup(args.tailwin), args.ntail, args.order, args.pol, args.stamp,
                                tup(args.diag) if args.diag else None))
```

```python
import sys, argparse, math, struct
sys.path.insert(0, "gen")
from asmlib import Asm, Ins

NAME = "standalone__tree_speculative_verify_tree_attention_over_candidate_token_tree__sampling"
HEADER = open("cdna_kernels/%s.s.ref" % NAME).read().split("; Override launch")[0]


def f2u(x):
    return struct.unpack("<I", struct.pack("<f", x))[0]


def gen(win=(5,), tailwin=(5,), ntail=2, order="inter", pol="nt", stamp=False, diag=None, s1pos=0):
    W = 4
    NT = 32
    a = Asm()
    sK, sV, sQ, sT = 24, 28, 32, 36
    sPair, sHalf, sWave, sC, sOff, sCnt, sTmp, sTmp2, sTmp3 = 40, 41, 42, 43, 44, 45, 46, 47, 48
    vKo, vVo, vM0, vM1, vM, vL, vT0, vT1, vAl, vMc, vLane = 1, 2, 3, 4, 5, 6, 7, 8, 9, 10, 11
    vQ = 12
    vD = 20
    vS = 28
    vP = 32
    vO = 40
    vTq, vTk, vTv, vTm = 48, 52, 56, 60
    vTO = 64
    vRing = 72
    vX = vRing
    nv = vRing + 64
    step = 16384 if order == "inter" else 32768

    vm = []
    state = dict(next=0)

    def wait(tag):
        if tag not in vm:
            return
        last = max(i for i, t in enumerate(vm) if t == tag)
        a("s_waitcnt vmcnt(%d)" % (len(vm) - 1 - last))
        del vm[: last + 1]

    def ring(n):
        return vRing + (n % 16) * 4

    def issue_upto(n):
        while state["next"] <= n and state["next"] < NT * 8:
            m = state["next"]
            j = m % 8
            if j == 0 and m > 0:
                a("s_add_u32 s%d, s%d, %d" % (sOff, sOff, step))
            r = ring(m)
            if j < 4:
                a("buffer_load_dwordx4 v[%d:%d], v%d, s[%d:%d], s%d offen offset:%d %s" %
                  (r, r + 3, vKo, sK, sK + 3, sOff, (j >> 1) * 2048 + (j & 1) * 128, pol))
            else:
                a("buffer_load_dwordx4 v[%d:%d], v%d, s[%d:%d], s%d offen offset:%d %s" %
                  (r, r + 3, vVo, sV, sV + 3, sOff, (j - 4) * 1024, pol))
            vm.append(m)
            state["next"] += 1

    def qk(n):
        j = n % 8
        p, i = j >> 1, j & 1
        d = "v[%d:%d]" % (vD + 4 * p, vD + 4 * p + 3)
        a("v_mfma_f32_16x16x32_bf16 %s, v[%d:%d], v[%d:%d], %s" %
          (d, ring(n), ring(n) + 3, vQ + 4 * i, vQ + 4 * i + 3, "0" if i == 0 else d))

    def pv(n):
        k = n % 8 - 4
        for u in range(2):
            r = ring(n) + 2 * u
            d = "v[%d:%d]" % (vO + 4 * u, vO + 4 * u + 3)
            a("v_mfma_f32_16x16x16_bf16 %s, v[%d:%d], v[%d:%d], %s" % (d, r, r + 1, vP + 2 * k, vP + 2 * k + 1, d))

    BC = "quad_perm:[0,0,2,2] row_mask:0xf bank_mask:0xf"

    def softmax(part):
        if part == 0:
            for k in range(4):
                a("v_add_f32_dpp v%d, v%d, v%d quad_perm:[1,0,3,2] row_mask:0xf bank_mask:0xf" %
                  (vS + k, vD + 2 * k + 1, vD + 2 * k))
            a("v_max3_f32 v%d, v%d, v%d, v%d" % (vT0, vS, vS + 1, vM))
            a("v_max3_f32 v%d, v%d, v%d, v%d" % (vT0, vS + 2, vS + 3, vT0))
            a("v_mov_b32 v%d, v%d" % (vT1, vT0))
            a("v_permlane32_swap_b32 v%d, v%d" % (vT0, vT1))
            a("v_max_f32 v%d, v%d, v%d" % (vT0, vT0, vT1))
            a("v_mov_b32 v%d, v%d" % (vT1, vT0))
            a("v_permlane16_swap_b32 v%d, v%d" % (vT0, vT1))
            a("v_max_f32 v%d, v%d, v%d" % (vT0, vT0, vT1))
        elif part == 1:
            a("v_mul_f32 v%d, s%d, v%d" % (vT1, sC, vT0))
            a("v_mov_b32 v%d, v%d" % (vM, vT0))
            a("v_sub_f32 v%d, v%d, v%d" % (vAl, vMc, vT1))
            for k in range(4):
                a("v_fma_f32 v%d, v%d, s%d, -v%d" % (vS + k, vS + k, sC, vT1))
            a("v_exp_f32 v%d, v%d" % (vAl, vAl))
            for k in range(4):
                a("v_exp_f32 v%d, v%d" % (vS + k, vS + k))
            a("v_mov_b32 v%d, v%d" % (vMc, vT1))
        elif part == 2:
            for r in range(8):
                a("v_mul_f32_dpp v%d, v%d, v%d %s" % (vO + r, vAl, vO + r, BC))
            a("v_fma_f32 v%d, v%d, v%d, v%d" % (vL, vL, vAl, vS))
            a("v_add_f32 v%d, v%d, v%d" % (vT0, vS + 1, vS + 2))
            a("v_add_f32 v%d, v%d, v%d" % (vL, vL, vS + 3))
            a("v_add_f32 v%d, v%d, v%d" % (vL, vL, vT0))
        else:
            for k in range(4):
                a("v_cvt_pk_bf16_f32 v%d, v%d, v%d" % (vS + k, vS + k, vS + k))
            for k in range(4):
                a("v_and_b32_dpp v%d, v%d, v%d %s" % (vP + 2 * k, vS + k, vM0, BC))
                a("v_and_b32_dpp v%d, v%d, v%d %s" % (vP + 2 * k + 1, vS + k, vM1, BC))

    def tree(part):
        if part < 2:
            if part == 0:
                a("v_mov_b32 v%d, 0" % (vTm + 1))
            for k in (2 * part, 2 * part + 1):
                a("v_lshlrev_b32 v%d, 16, v%d" % (vTm + 2, vTq + k))
                a("v_lshlrev_b32 v%d, 16, v%d" % (vTm + 3, vTk + k))
                a("v_fmac_f32 v%d, v%d, v%d" % (vTm + 1, vTm + 2, vTm + 3))
                a("v_and_b32 v%d, 0xffff0000, v%d" % (vTm + 2, vTq + k))
                a("v_and_b32 v%d, 0xffff0000, v%d" % (vTm + 3, vTk + k))
                a("v_fmac_f32 v%d, v%d, v%d" % (vTm + 1, vTm + 2, vTm + 3))
        elif part == 2:
            a("v_lshlrev_b32 v%d, 16, v%d" % (vTm, vTm))
            a("v_sub_f32 v%d, 1.0, v%d" % (vTm, vTm))
            a("v_mul_f32 v%d, 0x%08x, v%d" % (vTm, f2u(-1e9 * math.log2(math.e)), vTm))
            for sh in (8, 4, 2, 1):
                a("v_add_f32_dpp v%d, v%d, v%d row_ror:%d row_mask:0xf bank_mask:0xf" % (vTm + 1, vTm + 1, vTm + 1, sh))
            a("v_fma_f32 v%d, v%d, s%d, v%d" % (vTm, vTm + 1, sC, vTm))
            a("v_add_f32 v%d, s%d, v%d" % (vTm, sTmp3, vTm))
        else:
            for k in range(4):
                a("v_lshlrev_b32 v%d, 16, v%d" % (vTO + 2 * k, vTv + k))
                a("v_and_b32 v%d, 0xffff0000, v%d" % (vTO + 2 * k + 1, vTv + k))

    a("s_cmp_ge_u32 s2, 256")
    a("s_cbranch_scc1 L_end")
    a("s_load_dwordx16 s[4:19], s[0:1], 0")
    a("s_load_dwordx2 s[20:21], s[0:1], 64")
    if stamp:
        a("s_memrealtime s[60:61]")
    a("v_lshrrev_b32 v%d, 6, v0" % vT0)
    a("v_and_b32 v%d, 63, v0" % vLane)
    a("v_readfirstlane_b32 s%d, v%d" % (sWave, vT0))
    if order == "inter":
        a("s_lshr_b32 s%d, s2, 1" % sPair)
        a("s_and_b32 s%d, s2, 1" % sHalf)
        a("s_lshl_b32 s%d, s2, 19" % sOff)
    else:
        a("s_and_b32 s%d, s2, 127" % sPair)
        a("s_lshr_b32 s%d, s2, 7" % sHalf)
        a("s_lshl_b32 s%d, s%d, 20" % (sOff, sPair))
        a("s_lshl_b32 s%d, s%d, 14" % (sTmp, sHalf))
        a("s_add_u32 s%d, s%d, s%d" % (sOff, sOff, sTmp))
    a("v_and_b32 v%d, 1, v%d" % (vM0, vLane))
    a("v_lshrrev_b32 v%d, 4, v%d" % (vAl, vLane))
    a("v_lshlrev_b32 v%d, 4, v%d" % (vT1, vAl))
    a("v_lshl_add_u32 v%d, v%d, 6, v%d" % (vT1, vM0, vT1))
    a("v_bfe_u32 v%d, v%d, 2, 2" % (vT0, vLane))
    a("v_lshl_add_u32 v%d, v%d, 8, v%d" % (vMc, vT0, vT1))
    a("v_bfe_u32 v%d, v%d, 1, 1" % (vT0, vLane))
    a("v_lshl_add_u32 v%d, v%d, 10, v%d" % (vKo, vT0, vMc))
    a("v_lshlrev_b32 v%d, 4, v%d" % (vVo, vLane))
    a("s_lshl_b32 s%d, s%d, 12" % (sTmp, sWave))
    a("s_add_u32 s%d, s%d, s%d" % (sOff, sOff, sTmp))
    a("s_mov_b32 s%d, 0x8000000" % (sK + 2))
    a("s_mov_b32 s%d, 0x20000" % (sK + 3))
    a("s_mov_b32 s%d, 0x8000000" % (sV + 2))
    a("s_mov_b32 s%d, 0x20000" % (sV + 3))
    a("s_mov_b32 s%d, 0x20000" % (sQ + 2))
    a("s_mov_b32 s%d, 0x20000" % (sQ + 3))
    a("s_lshl_b32 s%d, s%d, 10" % (sTmp, sPair))
    if stamp and s1pos == 3:
        a("s_memrealtime s[62:63]")
    a("s_waitcnt lgkmcnt(0)")
    if stamp and s1pos == 1:
        a("s_memrealtime s[62:63]")
    a("s_mov_b32 s%d, s4" % sQ)
    a("s_mov_b32 s%d, s5" % (sQ + 1))
    a("s_mov_b32 s%d, s6" % sK)
    a("s_mov_b32 s%d, s7" % (sK + 1))
    a("s_mov_b32 s%d, s8" % sV)
    a("s_mov_b32 s%d, s9" % (sV + 1))
    for i in range(2):
        a("buffer_load_dwordx4 v[%d:%d], v%d, s[%d:%d], s%d offen offset:%d" %
          (vQ + 4 * i, vQ + 4 * i + 3, vMc, sQ, sQ + 3, sTmp, i * 128))
        vm.append("Q")
    issue_upto(win[-1] - 1)
    if stamp and s1pos == 2:
        a("s_memrealtime s[62:63]")
    a("buffer_load_dwordx4 v[%d:%d], v%d, s[%d:%d], s%d offen" % (vTq, vTq + 3, vVo, sQ, sQ + 3, sTmp))
    a("v_and_b32 v%d, 0xf0, v%d" % (vT0, vVo))
    a("s_mov_b32 s%d, s10" % sT)
    a("s_mov_b32 s%d, s11" % (sT + 1))
    a("s_mov_b32 s%d, 0x8000" % (sT + 2))
    a("s_mov_b32 s%d, 0x20000" % (sT + 3))
    a("s_lshl_b32 s%d, s%d, 8" % (sTmp, sPair))
    a("buffer_load_dwordx4 v[%d:%d], v%d, s[%d:%d], s%d offen" % (vTk, vTk + 3, vT0, sT, sT + 3, sTmp))
    a("s_mov_b32 s%d, s12" % sT)
    a("s_mov_b32 s%d, s13" % (sT + 1))
    a("buffer_load_dwordx4 v[%d:%d], v%d, s[%d:%d], s%d offen" % (vTv, vTv + 3, vT0, sT, sT + 3, sTmp))
    a("s_mov_b32 s%d, s14" % sT)
    a("s_mov_b32 s%d, s15" % (sT + 1))
    a("s_mov_b32 s%d, 32" % (sT + 2))
    a("s_lshr_b32 s%d, s%d, 3" % (sTmp, sPair))
    a("s_lshl_b32 s%d, s%d, 1" % (sTmp, sTmp))
    a("buffer_load_ushort v%d, off, s[%d:%d], s%d" % (vTm, sT, sT + 3, sTmp))
    vm.extend(["T"] * 4)
    a("v_lshlrev_b32 v%d, 4, v%d" % (vM0, vM0))
    a("v_mov_b32 v%d, 0xffff" % vM1)
    a("v_lshlrev_b32 v%d, v%d, v%d" % (vT1, vM0, vM1))
    a("v_and_b32 v%d, 2, v%d" % (vT0, vLane))
    a("v_cmp_eq_u32 vcc, 0, v%d" % vT0)
    a("v_cndmask_b32 v%d, 0, v%d, vcc" % (vM0, vT1))
    a("v_xor_b32 v%d, v%d, v%d" % (vM1, vM0, vT1))
    a("v_mov_b32 v%d, 0xff800000" % vM)
    a("v_mov_b32 v%d, 0xff800000" % vMc)
    a("v_mov_b32 v%d, 0" % vL)
    for r in range(8):
        a("v_mov_b32 v%d, 0" % (vO + r))
    c = (128 ** -0.5) * math.log2(math.e)
    a("s_mov_b32 s%d, 0x%08x" % (sC, f2u(c)))
    a("s_cmp_eq_u32 s%d, 0" % sHalf)
    a("s_cselect_b32 s%d, 0, 0xff800000" % sTmp3)

    def tile(t, w, eager=False, first=False, extra=None):
        for j in range(8):
            n = t * 8 + j
            wait(n)
            if stamp and n == 0 and s1pos == 0 or stamp and n == 16 and s1pos == 4:
                a("s_memrealtime s[62:63]")
            issue_upto(n + w[n % len(w)])
            if j < 4:
                qk(n)
                if not first:
                    pv(n - 4)
                if eager and j == 3:
                    for p in range(4):
                        softmax(p)
                if extra:
                    extra(j)
            else:
                if eager:
                    pv(n)
                else:
                    softmax(j - 4)

    tile(0, win, first=True)
    tile(1, win)
    nloop = (NT - 2 - ntail) // 2
    assert 2 + 2 * nloop + ntail == NT
    a("s_mov_b32 s%d, %d" % (sCnt, nloop))
    vm_entry = [x - 16 for x in vm]
    nxt_entry = state["next"] - 16
    a("L_loop:")
    mark = len(a.lines)
    tile(2, win)
    tile(3, win)
    assert [x - 32 for x in vm] == vm_entry and state["next"] - 32 == nxt_entry
    a("s_sub_u32 s%d, s%d, 1" % (sCnt, sCnt))
    a("s_cmp_lg_u32 s%d, 0" % sCnt)
    a("s_cbranch_scc1 L_loop")
    body = a.lines[mark:]
    chk1 = Asm(); chk1.lines = list(body)
    chk2 = Asm(); chk2.lines = list(body) + list(body)
    assert 2 * len(chk1.fix()) == len(chk2.fix())
    shift = (nloop - 1) * 16
    vm[:] = [x + shift for x in vm]
    state["next"] += shift
    t0 = 2 + 2 * nloop
    for t in range(t0, NT):
        a("; ---- tail tile %d" % t)
        tile(t, tailwin, eager=(t == NT - 1), extra=(tree if t == t0 else None))
    if stamp:
        a("s_memrealtime s[64:65]")
    a("v_mov_b32 v%d, v%d" % (vT1, vL))
    a("v_permlane32_swap_b32 v%d, v%d" % (vL, vT1))
    a("v_add_f32 v%d, v%d, v%d" % (vL, vL, vT1))
    a("v_mov_b32 v%d, v%d" % (vT1, vL))
    a("v_permlane16_swap_b32 v%d, v%d" % (vL, vT1))
    a("v_add_f32 v%d, v%d, v%d" % (vAl, vL, vT1))
    assert vT1 % 2 == 0 and vAl == vT1 + 1
    a("v_mov_b32 v%d, v%d" % (vT1, vMc))
    ML = W * 2048
    a("v_and_b32 v%d, 15, v%d" % (vT0, vLane))
    a("s_lshl_b32 s%d, s%d, 7" % (sTmp, sWave))
    a("v_lshl_add_u32 v%d, v%d, 3, s%d" % (vM0, vT0, sTmp))
    a("ds_write_b64 v%d, v[%d:%d] offset:%d" % (vM0, vT1, vT1 + 1, ML))
    a("v_bfe_u32 v%d, v%d, 2, 2" % (vT0, vLane))
    a("v_lshlrev_b32 v%d, 9, v%d" % (vM1, vT0))
    a("v_lshrrev_b32 v%d, 4, v%d" % (vT0, vLane))
    a("v_lshl_add_u32 v%d, v%d, 7, v%d" % (vM1, vT0, vM1))
    a("v_and_b32 v%d, 3, v%d" % (vT0, vLane))
    a("v_lshl_add_u32 v%d, v%d, 2, v%d" % (vM1, vT0, vM1))
    a("s_lshl_b32 s%d, s%d, 11" % (sTmp, sWave))
    a("v_add_u32 v%d, s%d, v%d" % (vM1, sTmp, vM1))
    for r in range(4):
        a("ds_write2_b32 v%d, v%d, v%d offset0:%d offset1:%d" % (vM1, vO + r, vO + 4 + r, r * 8, r * 8 + 4))
    a("s_waitcnt lgkmcnt(0)")
    a("s_barrier")
    a("s_cmp_lg_u32 s%d, 0" % sWave)
    a("s_cbranch_scc1 L_end")
    vML = vX
    vOW = vML + 2 * W
    a("v_lshrrev_b32 v%d, 4, v%d" % (vT0, vLane))
    a("v_lshlrev_b32 v%d, 5, v%d" % (vM0, vT0))
    a("v_lshlrev_b32 v%d, 5, v%d" % (vM1, vLane))
    for w in range(W):
        a("ds_read_b64 v[%d:%d], v%d offset:%d" % (vML + 2 * w, vML + 2 * w + 1, vM0, ML + w * 128))
    for w in range(W):
        a("ds_read_b128 v[%d:%d], v%d offset:%d" % (vOW + 8 * w, vOW + 8 * w + 3, vM1, w * 2048))
        a("ds_read_b128 v[%d:%d], v%d offset:%d" % (vOW + 8 * w + 4, vOW + 8 * w + 7, vM1, w * 2048 + 16))
    a("s_waitcnt lgkmcnt(%d)" % (2 * W))
    a("v_max3_f32 v%d, v%d, v%d, v%d" % (vM, vTm, vML, vML + 2))
    a("v_max3_f32 v%d, v%d, v%d, v%d" % (vM, vM, vML + 4, vML + 6))
    a("v_sub_f32 v%d, v%d, v%d" % (vTm, vTm, vM))
    for w in range(W):
        a("v_sub_f32 v%d, v%d, v%d" % (vML + 2 * w, vML + 2 * w, vM))
    a("v_exp_f32 v%d, v%d" % (vL, vTm))
    for w in range(W):
        a("v_exp_f32 v%d, v%d" % (vML + 2 * w, vML + 2 * w))
    for r in range(8):
        a("v_mul_f32 v%d, v%d, v%d" % (vO + r, vTO + r, vL))
    for w in range(W):
        a("v_fmac_f32 v%d, v%d, v%d" % (vL, vML + 2 * w, vML + 2 * w + 1))
    for w in range(W):
        a("s_waitcnt lgkmcnt(%d)" % (2 * (W - 1 - w)))
        for r in range(8):
            a("v_fmac_f32 v%d, v%d, v%d" % (vO + r, vOW + 8 * w + r, vML + 2 * w))
    a("v_mov_b32 v%d, v%d" % (vT1, vM))
    a("v_mov_b32 v%d, v%d" % (vT1 + 1, vL))
    if stamp:
        a("s_memrealtime s[66:67]")
    a("s_mov_b32 s%d, s20" % sK)
    a("s_mov_b32 s%d, s21" % (sK + 1))
    a("s_mov_b32 s%d, 0x200000" % (sK + 2))
    a("s_lshl_b32 s%d, s%d, 13" % (sTmp, sPair))
    a("s_lshl_b32 s%d, s%d, 12" % (sTmp2, sHalf))
    a("s_add_u32 s%d, s%d, s%d" % (sTmp, sTmp, sTmp2))
    a("v_lshlrev_b32 v%d, 3, v%d" % (vT0, vLane))
    a("buffer_store_dwordx4 v[%d:%d], v%d, s[%d:%d], s%d offen sc0 sc1" % (vO, vO + 3, vVo, sK, sK + 3, sTmp))
    a("buffer_store_dwordx4 v[%d:%d], v%d, s[%d:%d], s%d offen offset:1024 sc0 sc1" % (vO + 4, vO + 7, vVo, sK, sK + 3, sTmp))
    a("buffer_store_dwordx2 v[%d:%d], v%d, s[%d:%d], s%d offen offset:2048 sc0 sc1" % (vT1, vT1 + 1, vT0, sK, sK + 3, sTmp))
    a("s_mov_b32 s%d, s18" % sV)
    a("s_mov_b32 s%d, s19" % (sV + 1))
    a("s_mov_b32 s%d, 256" % (sV + 2))
    a("s_and_b32 s%d, s%d, 3" % (sOff, sPair))
    a("s_lshl_b32 s%d, s%d, 3" % (sOff, sOff))
    a("s_lshl_b32 s%d, 1, s%d" % (sCnt, sOff))
    a("v_mov_b32 v%d, s%d" % (vM0, sCnt))
    a("s_and_b32 s%d, s%d, 0x7c" % (sTmp2, sPair))
    a("s_waitcnt vmcnt(0)")
    a("s_mov_b64 exec, 1")
    a("buffer_atomic_add v%d, off, s[%d:%d], s%d sc0 sc1" % (vM0, sV, sV + 3, sTmp2))
    a("s_waitcnt vmcnt(0)")
    a("v_readfirstlane_b32 s%d, v%d" % (sCnt, vM0))
    a("s_mov_b64 exec, -1")
    a("s_lshr_b32 s%d, s%d, s%d" % (sCnt, sCnt, sOff))
    a("s_and_b32 s%d, s%d, 0xff" % (sCnt, sCnt))
    if stamp:
        a("s_memrealtime s[68:69]")
    a("s_cmp_eq_u32 s%d, 0" % sCnt)
    a("s_cbranch_scc1 L_stamp")
    a("s_xor_b32 s%d, s%d, 0x1000" % (sTmp, sTmp))
    vB = vX
    a("buffer_load_dwordx2 v[%d:%d], v%d, s[%d:%d], s%d offen offset:2048 sc0 sc1" % (vB + 8, vB + 9, vT0, sK, sK + 3, sTmp))
    a("buffer_load_dwordx4 v[%d:%d], v%d, s[%d:%d], s%d offen sc0 sc1" % (vB, vB + 3, vVo, sK, sK + 3, sTmp))
    a("buffer_load_dwordx4 v[%d:%d], v%d, s[%d:%d], s%d offen offset:1024 sc0 sc1" % (vB + 4, vB + 7, vVo, sK, sK + 3, sTmp))
    a("s_mov_b32 s%d, s16" % sQ)
    a("s_mov_b32 s%d, s17" % (sQ + 1))
    a("s_lshl_b32 s%d, s%d, 10" % (sTmp, sPair))
    a("s_waitcnt vmcnt(2)")
    a("v_max_f32 v%d, v%d, v%d" % (vT0, vM, vB + 8))
    a("v_sub_f32 v%d, v%d, v%d" % (vM, vM, vT0))
    a("v_sub_f32 v%d, v%d, v%d" % (vB + 8, vB + 8, vT0))
    a("v_exp_f32 v%d, v%d" % (vM, vM))
    a("v_exp_f32 v%d, v%d" % (vB + 8, vB + 8))
    a("v_mul_f32 v%d, v%d, v%d" % (vL, vL, vM))
    a("v_fmac_f32 v%d, v%d, v%d" % (vL, vB + 9, vB + 8))
    a("v_rcp_f32 v%d, v%d" % (vL, vL))
    a("v_mul_f32 v%d, v%d, v%d" % (vM, vM, vL))
    a("v_mul_f32 v%d, v%d, v%d" % (vB + 8, vB + 8, vL))
    for r in range(8):
        a("v_mul_f32 v%d, v%d, v%d" % (vO + r, vO + r, vM))
    a("s_waitcnt vmcnt(0)")
    for r in range(8):
        a("v_fmac_f32 v%d, v%d, v%d" % (vO + r, vB + r, vB + 8))
    for k in range(4):
        a("v_cvt_pk_bf16_f32 v%d, v%d, v%d" % (vB + k, vO + 2 * k, vO + 2 * k + 1))
    a("buffer_store_dwordx4 v[%d:%d], v%d, s[%d:%d], s%d offen" % (vB, vB + 3, vVo, sQ, sQ + 3, sTmp))
    a("L_stamp:")
    if stamp:
        a("s_waitcnt vmcnt(0)")
        a("s_memrealtime s[70:71]")
        a("s_getreg_b32 s72, hwreg(HW_REG_XCC_ID)")
        a("s_getreg_b32 s73, hwreg(HW_REG_HW_ID)")
        a("s_waitcnt lgkmcnt(0)")
        for k in range(14):
            a("v_mov_b32 v%d, s%d" % (vX + k, 60 + k))
        a("s_lshl_b32 s%d, s2, 6" % sTmp)
        a("s_add_u32 s%d, s%d, 0x100000" % (sTmp, sTmp))
        a("s_mov_b64 exec, 1")
        for k in range(4):
            a("buffer_store_dwordx4 v[%d:%d], off, s[%d:%d], s%d offset:%d" % (vX + 4 * k, vX + 4 * k + 3, sK, sK + 3, sTmp, 16 * k))
    if diag is not None:
        idx, mult = diag[:2]
        if len(diag) > 2:
            a("s_not_b32 s74, s60")
            a("v_mov_b32 v%d, s74" % vM0)
            a("buffer_atomic_umax v%d, off, s[%d:%d], 0 offset:128 sc1" % (vM0, sV, sV + 3))
            a("s_waitcnt vmcnt(0)")
            a("L_pre:")
            a("s_memrealtime s[76:77]")
            a("s_waitcnt lgkmcnt(0)")
            a("s_sub_u32 s76, s76, s60")
            a("s_cmp_lt_u32 s76, 8000")
            a("s_cbranch_scc1 L_pre")
            a("buffer_load_dword v%d, off, s[%d:%d], 0 offset:128 sc0 sc1" % (vM0, sV, sV + 3))
            a("s_waitcnt vmcnt(0)")
            a("v_readfirstlane_b32 s75, v%d" % vM0)
            a("s_not_b32 s75, s75")
            a("s_mov_b32 s78, s60")
            a("s_mov_b32 s60, s75")
            if idx == 0:
                a("s_mov_b32 s62, s78")
                idx = 1
        a("s_sub_u32 s74, s%d, s60" % (60 + 2 * idx))
        a("s_mul_i32 s74, s74, %d" % mult)
        a("s_add_u32 s74, s74, 10000")
        a("L_spin:")
        a("s_memrealtime s[76:77]")
        a("s_waitcnt lgkmcnt(0)")
        a("s_sub_u32 s76, s76, s60")
        a("s_cmp_lt_u32 s76, s74")
        a("s_cbranch_scc1 L_spin")
    a("L_end:")
    a("s_endpgm")

    lds = W * 2048 + W * 128
    txt = HEADER
    txt += "; @launch grid=(256,1,1) block=(%d,1,1) lds=%d\n" % (W * 64, lds)
    txt += '.amdgcn_target "amdgcn-amd-amdhsa--gfx950"\n.text\n.globl %s_kernel\n.p2align 8\n.type %s_kernel,@function\n%s_kernel:\n' % (NAME, NAME, NAME)
    txt += a.text()
    txt += """.section .rodata,"a"
.p2align 6
.amdhsa_kernel %s_kernel
  .amdhsa_next_free_vgpr %d
  .amdhsa_next_free_sgpr 80
  .amdhsa_accum_offset %d
  .amdhsa_group_segment_fixed_size 0
  .amdhsa_kernarg_size 72
  .amdhsa_user_sgpr_count 2
  .amdhsa_user_sgpr_kernarg_segment_ptr 1
  .amdhsa_system_sgpr_workgroup_id_x 1
.end_amdhsa_kernel
""" % (NAME, nv, (nv + 3) // 4 * 4)
    return txt


def tup(s):
    return tuple(int(x) for x in s.split(","))


if __name__ == "__main__":
    p = argparse.ArgumentParser()
    p.add_argument("--win", default="5")
    p.add_argument("--tailwin", default="5")
    p.add_argument("--ntail", type=int, default=2)
    p.add_argument("--order", default="inter")
    p.add_argument("--pol", default="nt")
    p.add_argument("--stamp", action="store_true")
    p.add_argument("--diag", default=None)
    p.add_argument("--s1pos", type=int, default=0)
    p.add_argument("-o", default="cdna_kernels/%s.s" % NAME)
    args = p.parse_args()
    open(args.o, "w").write(gen(tup(args.win), tup(args.tailwin), args.ntail, args.order, args.pol, args.stamp,
                                tup(args.diag) if args.diag else None, args.s1pos))
```
